```python
import torch

def _softmax(x, axis=-1):
    return torch.softmax(x, dim=axis)
def _gelu(x):
    return torch.nn.functional.gelu(x, approximate="tanh")
def _silu(x):
    return torch.nn.functional.silu(x)
def _sigmoid(x):
    return torch.sigmoid(x)
def _layernorm(x, axis=-1, eps=1e-5):
    m = x.mean(dim=axis, keepdim=True)
    v = x.var(dim=axis, keepdim=True, unbiased=False)
    return (x - m) / torch.sqrt(v + eps)
def _scatter_add(tgt, idx, src, axis=0):
    return tgt.clone().index_add_(axis, idx, src)
def _segment_sum(src, seg, n):
    out = torch.zeros((n,) + src.shape[1:], dtype=src.dtype)
    return out.index_add_(0, seg, src)
def _pad(x, pw):
    flat = tuple(v for pair in reversed(pw) for v in pair)
    return torch.nn.functional.pad(x, flat)

kernel_name = 'interleave_layers__sliding_block__mixer_channel_mlp__prompt'

def setup_inputs():

    _w = (lambda a: (lambda t: t.to(torch.bfloat16) if t.is_floating_point() else t)(torch.as_tensor(a)))
    def _A_setup():
        B, S, D = 1, 2048, 512
        return {
            "x": _w((lambda *s: torch.randn(*s, dtype=torch.bfloat16) * 0.05)(B, S, D)),
            "wqkv": _w((lambda *s: torch.randn(*s, dtype=torch.bfloat16) * 0.05)(D, 3 * D)),
            "wo": _w((lambda *s: torch.randn(*s, dtype=torch.bfloat16) * 0.05)(D, D)),
        }
    _A_in = _A_setup()

    def _B_setup():
        B, S, D, F = 1, 2048, 512, 1792
        return {
            "x": _w((lambda *s: torch.randn(*s, dtype=torch.bfloat16) * 0.05)(B, S, D)),
            "w1": _w((lambda *s: torch.randn(*s, dtype=torch.bfloat16) * 3.2)(D, F) * (D ** -0.5)),
            "b1": _w((lambda *s: torch.randn(*s, dtype=torch.bfloat16) * 0.8)(F)),
            "w2": _w((lambda *s: torch.randn(*s, dtype=torch.bfloat16) * 0.2)(F, D) * (F ** -0.5)),
            "b2": _w((lambda *s: torch.randn(*s, dtype=torch.bfloat16) * 0.2)(D)),
        }
    _B_in = _B_setup()

    return {
        "A_x": _A_in["x"],
        "A_wqkv": _A_in["wqkv"],
        "A_wo": _A_in["wo"],
        "B_x": _B_in["x"],
        "B_w1": _B_in["w1"],
        "B_b1": _B_in["b1"],
        "B_w2": _B_in["w2"],
        "B_b2": _B_in["b2"],
    }

def reference(A_x, A_wqkv, A_wo, B_x, B_w1, B_b1, B_w2, B_b2):
    def _A_ref(x, wqkv, wo):
        B, S, D = x.shape
        H = 32; Dh = D // H; W = 256
        qkv = (lambda x, *d: x.permute(*d))((x @ wqkv).reshape(B, S, 3, H, Dh), 2, 0, 3, 1, 4)
        q, k, v = qkv[0], qkv[1], qkv[2]
        scores = torch.einsum("bhqd,bhkd->bhqk", q, k) * (Dh ** -0.5)
        idx = torch.arange(S)
        mask = (idx[:, None] - idx[None, :] >= 0) & (idx[:, None] - idx[None, :] < W)
        scores = torch.where(mask[None, None], scores, -1e9)
        p = _softmax(scores, axis=-1)
        o = torch.einsum("bhqk,bhkd->bhqd", p, v)
        return (lambda x, *d: x.permute(*d))(o, 0, 2, 1, 3).reshape(B, S, D) @ wo

    def _B_ref(x, w1, b1, w2, b2):
        y = _layernorm(x, axis=-1)
        h = _gelu(torch.einsum("bsd,df->bsf", y, w1) + b1)
        return torch.einsum("bsf,fd->bsd", h, w2) + b2

    x = A_x
    x = x + _A_ref(_layernorm(x, axis=-1), A_wqkv, A_wo)
    x = x + _B_ref(_layernorm(x, axis=-1), B_w1, B_b1, B_w2, B_b2)
    x = x + _A_ref(_layernorm(x, axis=-1), A_wqkv, A_wo)
    x = x + _B_ref(_layernorm(x, axis=-1), B_w1, B_b1, B_w2, B_b2)
    return x
```

```python
import re

TRANS = ('v_exp_f32', 'v_log_f32', 'v_rcp_f32', 'v_rsq_f32', 'v_sqrt_f32', 'v_sin_f32', 'v_cos_f32')
REG_RE = re.compile(r'^(-?\|?)([vas])(\d+)\|?$')
RNG_RE = re.compile(r'^(-?\|?)([vas])\[(\d+):(\d+)\]\|?$')


def parse_regs(tok):
    tok = tok.strip()
    m = REG_RE.match(tok)
    if m:
        return [(m.group(2), int(m.group(3)))]
    m = RNG_RE.match(tok)
    if m:
        return [(m.group(2), i) for i in range(int(m.group(3)), int(m.group(4)) + 1)]
    if tok == 'vcc':
        return [('s', 106), ('s', 107)]
    if tok == 'vcc_lo':
        return [('s', 106)]
    if tok == 'vcc_hi':
        return [('s', 107)]
    if tok == 'exec':
        return [('s', 126), ('s', 127)]
    if tok == 'm0':
        return [('s', 124)]
    return []


def split_ops(s):
    out = []
    depth = 0
    cur = ''
    for ch in s:
        if ch in '[(':
            depth += 1
        if ch in '])':
            depth -= 1
        if ch == ',' and depth == 0:
            out.append(cur)
            cur = ''
        else:
            cur += ch
    if cur.strip():
        out.append(cur)
    return [o.strip() for o in out]


class Ins:
    pass


def classify(line):
    i = Ins()
    parts = line.split(None, 1)
    op = parts[0]
    rest = parts[1] if len(parts) > 1 else ''
    ops = split_ops(rest)
    if ops:
        last = ops[-1].split()
        if last:
            ops[-1] = last[0]
    i.op = op
    i.dst = []
    i.src = []
    i.kind = 'other'
    i.passes = 0
    i.srcc = []
    i.wide = False
    R = [parse_regs(o) for o in ops]
    if op.startswith('v_mfma'):
        i.kind = 'mfma'
        i.passes = 8 if '32x32x16' in op else (2 if '4x4x4' in op else 4)
        i.dst = R[0]
        i.src = R[1] + R[2]
        i.srcc = R[3] if len(R) > 3 else []
    elif op.startswith('v_cmp'):
        i.kind = 'valu'
        i.dst = R[0]
        i.src = sum(R[1:], [])
    elif op.startswith('v_permlane') and 'swap' in op:
        i.kind = 'valu'
        i.dst = R[0] + R[1]
        i.src = R[0] + R[1]
    elif op.startswith('v_'):
        i.kind = 'valu'
        i.dst = R[0] if R else []
        i.src = sum(R[1:], [])
        if op.startswith(('v_add_co', 'v_sub_co', 'v_addc_co', 'v_subb_co')):
            i.dst = R[0] + R[1]
            i.src = sum(R[2:], [])
        if op in ('v_cndmask_b32', 'v_cndmask_b32_e32') and len(ops) == 3:
            i.src += [('s', 106), ('s', 107)]
        if op.startswith(('v_fmac', 'v_dot2c', 'v_mac', 'v_writelane')):
            i.src += R[0]
    elif op.startswith(('global_load_lds', 'buffer_load')) and ('lds' in line.split()[0] or line.rstrip().endswith('lds') or ' lds' in line):
        i.kind = 'vmem'
        i.src = sum(R, []) + [('s', 124)]
        i.dma = True
    elif op.startswith(('global_load', 'buffer_load')):
        i.kind = 'vmem'
        i.dst = R[0]
        i.src = sum(R[1:], [])
    elif op.startswith(('global_store', 'buffer_store')):
        i.kind = 'vmem'
        i.src = sum(R, [])
        if 'x3' in op or 'x4' in op:
            i.wide = True
            i.wdata = R[1] if op.startswith('global') else R[0]
    elif op.startswith('global_atomic'):
        i.kind = 'vmem'
        if 'sc0' in line:
            i.dst = R[0]
            i.src = sum(R[1:], [])
        else:
            i.src = sum(R, [])
    elif op.startswith(('ds_read', 'ds_bpermute', 'ds_permute', 'ds_swizzle')):
        i.kind = 'ds'
        i.dst = R[0]
        i.src = sum(R[1:], [])
    elif op.startswith('ds_'):
        i.kind = 'ds'
        i.src = sum(R, [])
    elif op.startswith('s_'):
        i.kind = 'salu'
        if op.startswith(('s_cmp', 's_cbranch', 's_branch', 's_waitcnt', 's_nop', 's_barrier', 's_endpgm', 's_sleep', 's_setprio', 's_bitcmp')):
            i.src = sum(R, [])
        else:
            i.dst = R[0] if R else []
            i.src = sum(R[1:], [])
    return i


class Asm:
    def __init__(self):
        self.lines = []
        self.lbl = 0
        self.pos = 0
        self.lastw = {}
        self.lastc = {}
        self.lastwd = {}
        self.vm = 0
        self.lg = 0
        self.vm_done = 0
        self.lg_done = 0
        self.nops = 0
        self.ninstr = 0

    def raw(self, s):
        self.lines.append(s)

    def label(self, name):
        self.lines.append(name + ':')

    def newlabel(self, base='L'):
        self.lbl += 1
        return f'.{base}_{self.lbl}'

    def comment(self, s):
        self.lines.append('    ; ' + s)

    def text(self):
        return '\n'.join(self.lines) + '\n'

    def need(self, i):
        n = 0

        def req(p, ws):
            nonlocal n
            n = max(n, p + ws + 1)
        isv = lambda r: r[0] in 'va'
        for r in i.src + i.srcc:
            w = self.lastw.get(r)
            if not w:
                continue
            p, k, info = w
            if k == 'mfma':
                ws = 12 if info[0] == 8 else 8
                if i.kind == 'mfma' and r in i.srcc and r not in i.src:
                    if info[1] == tuple(i.srcc) and info[0] == i.passes:
                        ws = 2 if i.passes == 2 else 0
                    else:
                        ws = 10 if info[0] == 8 else 6
                req(p, ws)
            elif k == 'valu':
                if isv(r):
                    if i.kind == 'mfma':
                        req(p, 2)
                    if i.op.startswith(('v_readlane', 'v_readfirstlane')):
                        req(p, 1)
                    if i.op.startswith('v_permlane') or 'dpp' in i.line or 'row_' in i.line or 'quad_perm' in i.line:
                        req(p, 2)
                    if info == 'trans' and i.kind in ('valu', 'mfma', 'vmem', 'ds'):
                        req(p, 1)
                    if info and info.startswith('dot'):
                        if not (i.op == info[4:] and i.kind == 'valu' and r in i.dotc):
                            req(p, 3)
                else:
                    if i.kind == 'vmem':
                        req(p, 5)
                    elif i.kind in ('valu', 'mfma'):
                        req(p, 4 if i.op.startswith(('v_readlane', 'v_writelane')) else 2)
                    elif i.kind == 'salu':
                        req(p, 1)
            elif k == 'salu':
                if r == ('s', 124) and i.kind == 'vmem':
                    req(p, 1)
        for r in i.dst:
            w = self.lastw.get(r)
            if w:
                p, k, info = w
                if k == 'mfma' and not (i.kind == 'mfma' and info[1] == tuple(i.dst) and info[0] == i.passes):
                    req(p, 12 if info[0] == 8 else 8)
                if k == 'valu' and info and info.startswith('dot') and i.op != info[4:]:
                    req(p, 3)
            c = self.lastc.get(r)
            if c and i.kind != 'mfma':
                req(c[0], 7 if c[1] == 8 else 3)
            d = self.lastwd.get(r)
            if d is not None:
                req(d, 2)
        return n

    def emit1(self, line, count=True):
        line = line.strip()
        if not line:
            return None
        if line.startswith(';'):
            self.lines.append('    ' + line)
            return None
        code = line.split(';')[0].strip()
        i = classify(code)
        i.line = code
        i.dotc = []
        if i.op.startswith('v_dot2'):
            ops = split_ops(code.split(None, 1)[1])
            i.dotc = parse_regs(ops[0]) if i.op.startswith('v_dot2c') else parse_regs(ops[3].split()[0])
        n = self.need(i)
        if n > self.pos:
            k = n - self.pos
            self.nops += k
            while k > 0:
                c = min(k, 16)
                self.lines.append(f'    s_nop {c-1}')
                self.pos += c
                k -= c
        self.lines.append('    ' + line)
        self.ninstr += 1
        p = self.pos
        if i.op == 's_nop':
            self.pos += int(code.split()[1]) + 1
        else:
            self.pos += 1
        info = None
        if i.kind == 'mfma':
            info = (i.passes, tuple(i.dst))
            for r in i.srcc:
                self.lastc[r] = (p, i.passes)
        elif i.op.startswith(TRANS):
            info = 'trans'
        elif i.op.startswith('v_dot2'):
            info = 'dot:' + i.op
        for r in i.dst:
            self.lastw[r] = (p, i.kind, info)
        if i.wide:
            for r in i.wdata:
                self.lastwd[r] = p
        seq = None
        if i.kind == 'vmem' and count:
            seq = ('vm', self.vm)
            self.vm += 1
        elif i.kind == 'ds' and count:
            seq = ('lg', self.lg)
            self.lg += 1
        if i.op == 's_waitcnt':
            m = re.search(r'vmcnt\((\d+)\)', code)
            if m:
                self.vm_done = max(self.vm_done, self.vm - int(m.group(1)))
            m = re.search(r'lgkmcnt\((\d+)\)', code)
            if m:
                self.lg_done = max(self.lg_done, self.lg - int(m.group(1)))
        return seq

    def __call__(self, s, count=True):
        seq = None
        for ln in s.strip('\n').split('\n'):
            r = self.emit1(ln, count)
            if r is not None:
                seq = r
        return seq

    def wait(self, *seqs):
        vm = [s[1] for s in seqs if s and s[0] == 'vm' and s[1] >= self.vm_done]
        lg = [s[1] for s in seqs if s and s[0] == 'lg' and s[1] >= self.lg_done]
        parts = []
        if vm:
            parts.append(f'vmcnt({min(63, self.vm - 1 - max(vm))})')
        if lg:
            parts.append(f'lgkmcnt({min(15, self.lg - 1 - max(lg))})')
        if parts:
            self.emit1('s_waitcnt ' + ' '.join(parts))

    def wait_all(self, vm=True, lg=True):
        parts = []
        if vm:
            parts.append('vmcnt(0)')
        if lg:
            parts.append('lgkmcnt(0)')
        self.emit1('s_waitcnt ' + ' '.join(parts))

    def pad(self, n=16):
        need = self.pos
        for r, (p, k, info) in self.lastw.items():
            if k == 'mfma':
                need = max(need, p + (13 if info[0] == 8 else 9))
            elif k == 'valu':
                need = max(need, p + (6 if r[0] == 's' else 4))
        for r, c in self.lastc.items():
            need = max(need, c[0] + 8)
        for r, d in self.lastwd.items():
            need = max(need, d + 3)
        k = need - self.pos
        if k > 0:
            self.emit1(f's_nop {k-1}')


def kernel_desc(name, vgpr=512, accum=256, sgpr=102):
    return f'''.p2align 6
.amdhsa_kernel {name}
  .amdhsa_next_free_vgpr {vgpr}
  .amdhsa_next_free_sgpr {sgpr}
  .amdhsa_accum_offset {accum}
  .amdhsa_group_segment_fixed_size 0
  .amdhsa_kernarg_size 88
  .amdhsa_user_sgpr_count 2
  .amdhsa_user_sgpr_kernarg_segment_ptr 1
  .amdhsa_system_sgpr_workgroup_id_x 1
.end_amdhsa_kernel
'''


def kernel_head(name):
    return f'.globl {name}\n.p2align 8\n.type {name},@function\n{name}:\n'
```

```python
import sys, math
from asm2 import *

NAME = 'interleave_layers__sliding_block__mixer_channel_mlp__prompt_kernel'

FL = 0x1000
F_WT = FL
F_X = FL + 0x8000
F_O = FL + 0x10000
F_H = FL + 0x18000
F_KV = FL + 0x20000
ST = 0x80000
PROF = 0x180000
WT = 0x200000
W1T = WT
W2T = WT + 0x1C0000
WOT = WT + 0x380000
G0 = 0x600000
GB = 0x200000
XF = 0x0
OF = 0x60000
KV = 0xA0000
HF = 0x120000

LB = 114688
RING = 98304
SLOT11 = LB + 11 * 4096
ONES = SLOT11
RB = SLOT11 + 2048

sX, sWQKV, sWO, sW1, sB1, sW2, sB2, sOUT, sDBG, sWS = 's[4:5]', 's[6:7]', 's[8:9]', 's[12:13]', 's[14:15]', 's[16:17]', 's[18:19]', 's[20:21]', 's[22:23]', 's[24:25]'
sG, sM, sW, sRH, sCT, sEP, sL, sMODE, sGB = 's26', 's27', 's28', 's29', 's30', 's31', 's32', 's33', 's34'
sTT, sFT, sLIM, sONE2, sHM = 's35', 's36', 's37', 's38', 's[40:41]'
sN16 = 's[42:43]'
sT0, sT1, sT2, sT3, sT4, sT5 = 's44', 's45', 's46', 's47', 's48', 's49'
sRING = 's50'
sCNT = 's51'
sXCC = 's52'
sPT = 's[54:55]'
sPI = 's56'
MASK0 = 64

vLANE, vL16, vT, vH = 'v1', 'v2', 'v3', 'v4'
vTR0, vTR1 = 'v5', 'v6'
vHZ = 'v7'
RES = 8
XE = 16
vR, vS, vK0, vK1 = 'v22', 'v23', 'v24', 'v25'
vA0, vA1, vA2, vA3, vA4, vA5 = 'v26', 'v27', 'v28', 'v29', 'v30', 'v31'
X = 32
ACC = 160
AEXT = 224

BIGNEG = 0xF149F2CA


def vr(b, n):
    return f'v[{b}:{b+n-1}]' if n > 1 else f'v{b}'


def ar(b, n):
    return f'a[{b}:{b+n-1}]' if n > 1 else f'a{b}'


MF32 = 'v_mfma_f32_32x32x16_bf16'
MF16 = 'v_mfma_f32_16x16x32_bf16'


class Gen:
    def __init__(self, prof=False, stop=None):
        self.a = Asm()
        self.prof = prof
        self.stop = stop
        self.nstamp = 0
        self.names = []

    def stamp(self, name=''):
        if not self.prof:
            return
        a = self.a
        self.names.append(name)
        a(f'''
        s_memtime {sPT}
        s_waitcnt lgkmcnt(0)
        s_mov_b32 m0, {sPI}
        s_add_u32 {sPI}, {sPI}, 1
        v_writelane_b32 v0, s54, m0
        ''')

    def poll(self, vaddr, shift=0):
        a = self.a
        lp = a.newlabel('poll')
        dn = a.newlabel('polld')
        a(f's_mov_b32 {sCNT}, 0')
        a.label(lp)
        a(f'global_load_dword {vA5}, {vaddr}, {sWS} sc1', count=False)
        a('s_waitcnt vmcnt(0)')
        if shift:
            a(f'v_xor_b32 {vA4}, {sEP}, {vA5}')
            a(f'v_cmp_le_u32 vcc, {1 << shift}, {vA4}')
        else:
            a(f'v_cmp_ne_u32 vcc, {sEP}, {vA5}')
        a(f'''
        s_add_u32 {sCNT}, {sCNT}, 1
        s_cmp_eq_u64 vcc, 0
        s_cbranch_scc1 {dn}
        s_cmp_lt_u32 {sCNT}, {sLIM}
        s_cbranch_scc1 {lp}
        s_mov_b32 {sLIM}, 1
        ''')
        a.label(dn)

    def stores(self, lines):
        a = self.a
        sl = a.newlabel('slow')
        en = a.newlabel('sten')
        a(f's_cmp_eq_u32 {sMODE}, 1')
        a.pad()
        a(f's_cbranch_scc0 {sl}')
        seq = None
        for ln in lines:
            seq = a(ln)
        a(f's_branch {en}')
        a.label(sl)
        for ln in lines:
            a(ln + ' sc1', count=False)
        a.label(en)
        a('s_nop 1')
        return seq

    def flag_store(self, vaddr, slow=False, val=None):
        a = self.a
        a(f'v_mov_b32 {vA5}, {val or sEP}')
        ln = f'global_store_dword {vaddr}, {vA5}, {sWS}'
        if slow:
            a(ln + ' sc1')
        else:
            self.stores([ln])

    def stats_publish(self, inst_off_sgpr, slow=False):
        a = self.a
        s, q = vA0, vA1
        a(f'v_mov_b32 {s}, 0\nv_mov_b32 {q}, 0')
        for i in range(8):
            a(f'v_dot2_f32_bf16 {s}, v{RES+i}, {sONE2}, {s}')
            a(f'v_dot2_f32_bf16 {q}, v{RES+i}, v{RES+i}, {q}')
        a(f'''
        s_lshl_b32 {sT0}, {sG}, 2
        s_lshl_b32 {sT1}, {sRH}, 1
        s_add_u32 {sT0}, {sT0}, {sT1}
        s_add_u32 {sT0}, {sT0}, {sTT}
        s_lshl_b32 {sT0}, {sT0}, 12
        s_lshl_b32 {sT1}, {sCT}, 1
        s_add_u32 {sT1}, {sT1}, {sFT}
        s_lshl_b32 {sT1}, {sT1}, 8
        s_add_u32 {sT0}, {sT0}, {sT1}
        s_add_u32 {sT0}, {sT0}, {inst_off_sgpr}
        s_add_u32 {sT0}, {sT0}, {ST}
        v_lshlrev_b32 {vA2}, 3, {vT}
        v_lshl_add_u32 {vA2}, {vH}, 2, {vA2}
        v_add_u32 {vA2}, {sT0}, {vA2}
        v_permlane32_swap_b32 {s}, {q}
        s_nop 1
        v_add_f32 {s}, {s}, {q}
        ''')
        return f'global_store_dword {vA2}, {s}, {sWS}'

    def xflag_addr(self, v, inst_off_sgpr):
        a = self.a
        a(f'''
        s_lshl_b32 {sT0}, {sG}, 2
        s_lshl_b32 {sT1}, {sRH}, 1
        s_add_u32 {sT0}, {sT0}, {sT1}
        s_add_u32 {sT0}, {sT0}, {sTT}
        s_lshl_b32 {sT0}, {sT0}, 7
        s_lshl_b32 {sT1}, {sCT}, 1
        s_add_u32 {sT1}, {sT1}, {sFT}
        s_lshl_b32 {sT1}, {sT1}, 2
        s_add_u32 {sT0}, {sT0}, {sT1}
        s_add_u32 {sT0}, {sT0}, {inst_off_sgpr}
        s_add_u32 {sT0}, {sT0}, {F_X}
        v_mov_b32 {v}, {sT0}
        ''')

    def stats_load(self, inst_sgpr, dst):
        a = self.a
        a(f'''
        s_lshl_b32 {sT0}, {sG}, 2
        s_add_u32 {sT0}, {sT0}, {sW}
        s_lshl_b32 {sT0}, {sT0}, 12
        s_lshl_b32 {sT1}, {inst_sgpr}, 18
        s_add_u32 {sT0}, {sT0}, {sT1}
        s_add_u32 {sT0}, {sT0}, {ST}
        v_lshlrev_b32 {vA2}, 3, {vT}
        v_lshl_add_u32 {vA2}, {vH}, 11, {vA2}
        v_add_u32 {vA2}, {sT0}, {vA2}
        ''')
        seq = None
        for j in range(8):
            seq = a(f'global_load_dwordx2 {vr(dst+2*j,2)}, {vA2}, {sWS} offset:{j*256} sc1')
        return seq

    def stats_ops(self, src, mlp):
        o = []
        S, Q = f'v{src}', f'v{src+1}'
        for j in range(1, 8):
            o.append(f'v_add_f32 {S}, {S}, v{src+2*j}')
            o.append(f'v_add_f32 {Q}, {Q}, v{src+2*j+1}')
        t0, t1, t2, t3 = [f'v{src+i}' for i in (2, 3, 4, 5)]
        o += [
            f'v_permlane32_swap_b32 {S}, {Q}',
            f'v_add_f32 {S}, {S}, {Q}',
            f'v_mov_b32 {Q}, {S}',
            f'v_permlane32_swap_b32 {S}, {Q}',
            f'v_mul_f32 {S}, 0xbb000000, {S}',
            f'v_mul_f32 {t0}, {S}, {S}',
            f'v_mul_f32 {Q}, 0x3b000000, {Q}',
            f'v_sub_f32 {Q}, {Q}, {t0}',
            f'v_max_f32 {Q}, 0, {Q}',
            f'v_add_f32 {t0}, 0x3727c5ac, {Q}',
            f'v_rsq_f32 {vR}, {t0}',
            f'v_cvt_pk_bf16_f32 {t1}, {S}, {S}',
            f'v_lshlrev_b32 {t1}, 16, {t1}',
            f'v_sub_f32 {t1}, {S}, {t1}',
            f'v_mul_f32 {t1}, {t1}, {vHZ}',
            f'v_cvt_pk_bf16_f32 v{XE+2}, {S}, {t1}',
        ]
        if mlp:
            o += [
                f'v_mul_f32 {t2}, {vR}, {vR}',
                f'v_mul_f32 {vS}, {t0}, {vR}',
                f'v_mov_b32 {t3}, 0x3727c5ac',
                f'v_fma_f32 {t2}, {Q}, {t2}, {t3}',
                f'v_rsq_f32 {t3}, {t2}',
                f'v_mul_f32 {vS}, {vS}, {t2}',
                f'v_mul_f32 {vR}, {vR}, {t3}',
                f'v_mul_f32 {vS}, {vS}, {t3}',
                f'v_cvt_pk_bf16_f32 {t1}, {vS}, {vS}',
                f'v_lshlrev_b32 {t1}, 16, {t1}',
                f'v_sub_f32 {t1}, {vS}, {t1}',
                f'v_mul_f32 {t1}, {t1}, {vHZ}',
                f'v_mul_f32 {t2}, {vS}, {vHZ}',
                f'v_cvt_pk_bf16_f32 v{XE+3}, {t2}, {t1}',
                f'v_mul_f32 {t0}, {vR}, {vR}',
                f'v_mul_f32 {vK0}, {f2h(GK0)}, {vR}',
                f'v_mul_f32 {t0}, {t0}, {vR}',
                f'v_mul_f32 {vK1}, {f2h(GK1)}, {t0}',
            ]
        else:
            o += [f'v_mov_b32 v{XE+3}, 0']
        return o

    def ext_w(self, c, dst, tmp):
        a = self.a
        t0, t1 = f'v{tmp}', f'v{tmp+1}'
        a(f'''
        v_cvt_pk_bf16_f32 {t0}, {c}, {c}
        v_lshlrev_b32 {t0}, 16, {t0}
        v_sub_f32 {t0}, {c}, {t0}
        v_cndmask_b32 {t0}, {c}, {t0}, {sHM}
        v_mul_f32 {t1}, {c}, {vHZ}
        v_cvt_pk_bf16_f32 {dst}, {t0}, {t1}
        ''')

    def trw(self, dst, s, part):
        a = self.a
        off = s * 3072 + part * 1024
        b = vTR0
        if s >= 16:
            b = vTR1
            off -= 49152
        a(f'ds_read_b64_tr_b16 {vr(dst,2)}, {b} offset:{off}')
        return a(f'ds_read_b64_tr_b16 {vr(dst+2,2)}, {b} offset:{off+512}')

    def wqkv_dma(self, vsrc, q, parts):
        a = self.a
        a(f's_mul_i32 {sT0}, {sW}, 3072')
        a(f's_add_u32 m0, {sT0}, {q*4*3072}')
        a(f'v_add_u32 {vA3}, {q*4*49152}, {vsrc}')
        seq = None
        for p in parts:
            seq = a(f'global_load_lds_dwordx4 {vA3}, {sWQKV} offset:{p*1024}')
        return seq

    def build(self):
        a = self.a
        a.raw('; @launch grid=(256,1,1) block=(256,1,1) lds=163840')
        a.raw('.amdgcn_target "amdgcn-amd-amdhsa--gfx950"\n.text')
        a.raw(kernel_head(NAME))
        self.prologue()
        self.p1_l1()
        a('s_branch .P1C')
        a.label('.LOOP')
        self.p1_l2()
        a.label('.P1C')
        a.wait_all()
        a.pad()
        self.p1_common()
        self.attention()
        self.p2()
        self.p3()
        self.p4()
        a.label('.END')
        self.finish()
        a.label('.EXIT')
        a('s_endpgm')
        a.raw('.section .rodata,"a"')
        a.raw(kernel_desc(NAME, 512, 256, 102))
        return a.text()

    def check_stop(self, name):
        if self.stop == name:
            self.a('s_branch .END')

    def prologue(self):
        a = self.a
        a(f'''
        s_cmp_ge_u32 s2, 256
        s_cbranch_scc1 .EXIT
        s_load_dwordx4 s[4:7], s[0:1], 0
        s_load_dwordx2 s[8:9], s[0:1], 16
        s_load_dwordx8 s[12:19], s[0:1], 32
        s_load_dwordx4 s[20:23], s[0:1], 64
        s_load_dwordx2 s[24:25], s[0:1], 80
        v_lshrrev_b32 v5, 6, v0
        v_and_b32 {vLANE}, 63, v0
        s_and_b32 {sT0}, s2, 7
        v_readfirstlane_b32 {sW}, v5
        s_lshr_b32 {sT1}, s2, 3
        s_lshr_b32 {sT2}, {sT1}, 4
        s_lshl_b32 {sT0}, {sT0}, 1
        s_add_u32 {sG}, {sT0}, {sT2}
        s_and_b32 {sM}, {sT1}, 15
        s_lshr_b32 {sRH}, {sM}, 3
        s_and_b32 {sCT}, {sM}, 7
        s_lshr_b32 {sTT}, {sW}, 1
        s_and_b32 {sFT}, {sW}, 1
        s_mov_b32 {sL}, 0
        s_mov_b32 {sMODE}, 0
        s_mov_b32 {sLIM}, 40000
        s_mov_b32 {sPI}, 0
        s_mov_b32 {sONE2}, 0x3f803f80
        s_mov_b32 s40, 0
        s_mov_b32 s41, -1
        s_mov_b32 s42, 0xffff0000
        s_mov_b32 s43, 0xffff0000
        s_lshl_b32 {sGB}, {sG}, 21
        s_add_u32 {sGB}, {sGB}, {G0}
        s_getreg_b32 {sXCC}, hwreg(HW_REG_XCC_ID)
        s_and_b32 {sXCC}, {sXCC}, 7
        v_lshlrev_b32 {vL16}, 4, {vLANE}
        v_and_b32 {vT}, 31, {vLANE}
        v_lshrrev_b32 {vH}, 5, {vLANE}
        v_mov_b32 v0, 0
        v_cndmask_b32 {vHZ}, 1.0, 0, {sHM}
        v_bfe_u32 {vA0}, {vLANE}, 2, 2
        v_lshl_add_u32 {vA0}, {vH}, 2, {vA0}
        v_lshlrev_b32 {vA0}, 6, {vA0}
        v_bfe_u32 {vA1}, {vLANE}, 4, 1
        v_lshl_add_u32 {vA0}, {vA1}, 5, {vA0}
        v_and_b32 {vA1}, 3, {vLANE}
        v_lshl_add_u32 {vTR0}, {vA1}, 3, {vA0}
        v_add_u32 {vTR1}, 49152, {vTR0}
        v_mov_b32 v{XE}, 0
        v_mov_b32 v{XE+1}, 0
        v_mov_b32 v{XE+4}, 0
        v_mov_b32 v{XE+5}, 0
        v_lshlrev_b32 {vA0}, 2, {vH}
        v_sub_u32 {vA0}, {vT}, {vA0}
        ''')
        for j in range(16):
            c = 8 * (j >> 2) + (j & 3)
            a(f'v_cmp_le_i32 s[{MASK0+2*j}:{MASK0+2*j+1}], {c}, {vA0}')
        a('s_waitcnt lgkmcnt(0)')
        self.stamp('start')

    def p1_l1(self):
        a = self.a
        T = ACC + 48
        WB = ACC + 48
        PO = 232
        CS = 236
        XA = 244
        XR = 248
        WS_ = 252
        vEPO = 'v253'
        a(f'v_mov_b32 {vA0}, 0')
        ep = a(f'global_load_dword {vEPO}, {vA0}, {sWS} sc1')
        a(f'''
        s_lshl_b32 {sT0}, {sG}, 7
        s_lshl_b32 {sT1}, {sRH}, 6
        s_add_u32 {sT0}, {sT0}, {sT1}
        s_lshl_b32 {sT1}, {sTT}, 5
        s_add_u32 {sT0}, {sT0}, {sT1}
        s_lshl_b32 {sT0}, {sT0}, 10
        s_lshl_b32 {sT1}, {sCT}, 7
        s_add_u32 {sT0}, {sT0}, {sT1}
        s_lshl_b32 {sT1}, {sFT}, 6
        s_add_u32 {sT0}, {sT0}, {sT1}
        v_lshlrev_b32 {vA0}, 10, {vT}
        v_lshl_add_u32 {vA0}, {vH}, 3, {vA0}
        v_add_u32 {vA0}, {sT0}, {vA0}
        ''')
        for i in range(4):
            rs = a(f'global_load_dwordx2 {vr(RES+2*i,2)}, {vA0}, {sX} offset:{16*i}')
        a(f'''
        v_lshrrev_b32 {vA0}, 2, {vLANE}
        v_and_b32 {vA1}, 3, {vLANE}
        s_cmp_eq_u32 {sW}, 3
        s_cselect_b32 {sT2}, 1, 3
        v_and_b32 {vA2}, {sT2}, {vA1}
        s_movk_i32 {sT3}, 3584
        v_mul_u32_u24 {vA3}, {sT3}, {vA0}
        v_lshl_add_u32 {vA3}, {vA2}, 4, {vA3}
        s_mul_i32 {sT0}, {sG}, {32*3584}
        s_mul_i32 {sT1}, {sM}, 224
        s_add_u32 {sT0}, {sT0}, {sT1}
        s_lshl_b32 {sT1}, {sW}, 6
        s_add_u32 {sT0}, {sT0}, {sT1}
        v_add_u32 {vA3}, {sT0}, {vA3}
        s_mul_i32 {sT5}, {sW}, 3072
        s_mov_b32 m0, {sT5}
        v_lshlrev_b32 {vA4}, 10, {vA0}
        global_load_lds_dwordx4 {vA3}, {sW1}
        v_add_u32 {vA3}, {16*3584}, {vA3}
        s_add_u32 m0, {sT5}, {4*3072}
        v_lshl_add_u32 {vA4}, {vA1}, 4, {vA4}
        global_load_lds_dwordx4 {vA3}, {sW1}
        s_lshl_b32 {sT0}, {sCT}, 7
        s_lshl_b32 {sT1}, {sRH}, 6
        s_add_u32 {sT0}, {sT0}, {sT1}
        v_add_u32 {vA4}, {sT0}, {vA4}
        s_lshl_b32 {sT2}, {sW}, 1
        s_min_u32 {sT2}, {sT2}, 5
        s_mul_i32 {sT3}, {sG}, 7
        s_add_u32 {sT2}, {sT2}, {sT3}
        s_lshl_b32 {sT3}, {sT2}, 14
        v_add_u32 {vA3}, {sT3}, {vA4}
        s_add_u32 m0, {sT5}, {8*3072}
        s_nop 0
        global_load_lds_dwordx4 {vA3}, {sW2}
        v_add_u32 {vA3}, 16384, {vA3}
        s_add_u32 m0, {sT5}, {12*3072}
        s_lshl_b32 {sT3}, {sG}, 1
        global_load_lds_dwordx4 {vA3}, {sW2}
        s_add_u32 {sT3}, {sT3}, {sFT}
        s_lshl_b32 {sT4}, {sT3}, 14
        v_add_u32 {vA3}, {sT4}, {vA4}
        s_add_u32 m0, {sT5}, {16*3072}
        s_nop 0
        ''')
        tj = a(f'global_load_lds_dwordx4 {vA3}, {sWO}')
        a(f's_mov_b32 s57, {sT2}\ns_mov_b32 s58, {sT3}')
        a(f'''
        v_and_b32 {vA2}, 3, {vA0}
        v_bfe_u32 {vA3}, {vA0}, 2, 1
        v_lshl_add_u32 {vA2}, {vA3}, 3, {vA2}
        v_bfe_u32 {vA3}, {vA0}, 3, 1
        v_lshl_add_u32 {vA2}, {vA3}, 2, {vA2}
        s_movk_i32 {sT0}, 3072
        v_mul_u32_u24 {vA2}, {sT0}, {vA2}
        v_lshl_add_u32 {vA2}, {vA1}, 4, {vA2}
        s_mul_i32 {sT0}, {sW}, 49152
        s_lshl_b32 {sT1}, {sM}, 6
        s_add_u32 {sT0}, {sT0}, {sT1}
        v_add_u32 v{WS_}, {sT0}, {vA2}
        ''')
        a(f'''
        s_lshl_b32 {sT0}, {sG}, 7
        s_lshl_b32 {sT1}, {sW}, 5
        s_add_u32 {sT0}, {sT0}, {sT1}
        s_lshl_b32 {sT0}, {sT0}, 10
        s_lshl_b32 {sRING}, {sW}, 14
        s_add_u32 {sRING}, {sRING}, {RING}
        v_lshrrev_b32 {vA0}, 3, {vLANE}
        v_and_b32 {vA1}, 7, {vLANE}
        v_lshrrev_b32 {vA2}, 1, {vA0}
        v_xor_b32 {vA1}, {vA1}, {vA2}
        v_lshlrev_b32 {vA0}, 10, {vA0}
        v_add_u32 {vA0}, {sT0}, {vA0}
        v_lshl_add_u32 v{XA}, {vA1}, 4, {vA0}
        v_xor_b32 {vA1}, 4, {vA1}
        v_lshl_add_u32 v{XA+1}, {vA1}, 4, {vA0}
        v_add_u32 v{XA+1}, 8192, v{XA+1}
        v_add_u32 v{XA+2}, 16384, v{XA}
        v_add_u32 v{XA+3}, 16384, v{XA+1}
        ''')

        def xdma(q):
            seq = None
            for j in range(4):
                a(f's_add_u32 m0, {sRING}, {(q % 4)*4096 + j*1024 - q*128}' if (q % 4)*4096 + j*1024 - q*128 >= 0 else
                  f's_sub_u32 m0, {sRING}, {-((q % 4)*4096 + j*1024 - q*128)}')
                seq = a(f'global_load_lds_dwordx4 v{XA+j}, {sX} offset:{q*128}')
            return seq
        wseq = {}
        xseq = {}
        for q in range(4):
            wseq[q] = self.wqkv_dma(f'v{WS_}', q, (1, 2))
            xseq[q] = xdma(q)
        for q in range(4, 8):
            wseq[q] = self.wqkv_dma(f'v{WS_}', q, (1, 2))
        a(f'''
        v_bfe_u32 {vA0}, {vT}, 1, 3
        v_lshlrev_b32 {vA1}, 7, {vT}
        v_add_u32 {vA1}, {sRING}, {vA1}
        ''')
        for sp in range(4):
            a(f'''
            v_add_u32 {vA2}, {2*sp}, {vH}
            v_xor_b32 {vA2}, {vA2}, {vA0}
            v_lshl_add_u32 v{XR+sp}, {vA2}, 4, {vA1}
            ''')
        self.pattern_ones(PO)
        a.wait(rs)
        a(f'v_readfirstlane_b32 {sEP}, {vEPO}')
        a(f's_add_u32 {sEP}, {sEP}, 0x9E3779B9')
        a(f's_mov_b32 {sT5}, 0')
        st = self.stats_publish(sT5)
        a(st + ' sc1')
        a.wait(tj)
        a(f's_mul_i32 {sT5}, {sW}, 3072')
        a(f'v_add_u32 {vA0}, {sT5}, {vTR0}')
        TB = X
        for i in range(5):
            a(f'ds_read_b64_tr_b16 {vr(TB+4*i,2)}, {vA0} offset:{i*4*3072}')
            tl = a(f'ds_read_b64_tr_b16 {vr(TB+4*i+2,2)}, {vA0} offset:{i*4*3072+512}')
        a(f'''
        v_and_b32 {vA1}, 15, {vLANE}
        v_lshl_add_u32 {vA1}, {vH}, 4, {vA1}
        v_lshlrev_b32 {vA1}, 4, {vA1}
        s_cmp_eq_u32 {sW}, 3
        s_cselect_b64 vcc, -1, 0
        v_cndmask_b32 {vA1}, {vL16}, {vA1}, vcc
        s_mul_i32 {sT0}, {sM}, 0x1C000
        s_mul_i32 {sT1}, {sG}, {2*3584}
        s_add_u32 {sT0}, {sT0}, {sT1}
        s_lshl_b32 {sT1}, {sW}, 10
        s_add_u32 {sT0}, {sT0}, {sT1}
        s_add_u32 {sT0}, {sT0}, {W1T}
        v_add_u32 {vA1}, {sT0}, {vA1}
        s_mul_i32 {sT0}, {sCT}, 0x38000
        s_lshl_b32 {sT1}, s57, 11
        s_add_u32 {sT0}, {sT0}, {sT1}
        s_lshl_b32 {sT2}, {sRH}, 10
        s_add_u32 {sT0}, {sT0}, {sT2}
        s_add_u32 {sT0}, {sT0}, {W2T}
        v_add_u32 {vA2}, {sT0}, {vL16}
        s_lshl_b32 {sT0}, {sCT}, 16
        s_lshl_b32 {sT1}, s58, 11
        s_add_u32 {sT0}, {sT0}, {sT1}
        s_add_u32 {sT0}, {sT0}, {sT2}
        s_add_u32 {sT0}, {sT0}, {WOT}
        v_add_u32 {vA4}, {sT0}, {vL16}
        ''')
        a.wait(tl)
        a(f'''
        global_store_dwordx4 {vA1}, {vr(TB,4)}, {sWS} sc1
        global_store_dwordx4 {vA1}, {vr(TB+4,4)}, {sWS} offset:3584 sc1
        global_store_dwordx4 {vA2}, {vr(TB+8,4)}, {sWS} sc1
        global_store_dwordx4 {vA2}, {vr(TB+12,4)}, {sWS} offset:2048 sc1
        global_store_dwordx4 {vA4}, {vr(TB+16,4)}, {sWS} sc1
        ''')
        for q in range(8):
            self.wq_last = self.wqkv_dma(f'v{WS_}', q, (0,))
        self.stamp('tjob')
        accK, accV = ACC, ACC + 16
        for q in range(8):
            a.wait(wseq[q], xseq[q])
            a('s_barrier')
            if q == 4:
                a(f's_mov_b32 {sT5}, 0')
                self.xflag_addr(vA3, sT5)
                a(f's_and_b32 {sT0}, {sEP}, -8\ns_or_b32 {sT0}, {sT0}, {sXCC}')
                self.flag_store(vA3, slow=True, val=sT0)
                a(f'''
                s_lshl_b32 {sT0}, {sM}, 4
                s_add_u32 {sT0}, {sT0}, {sG}
                s_lshl_b32 {sT0}, {sT0}, 7
                s_add_u32 {sT0}, {sT0}, {F_WT}
                v_mov_b32 {vA3}, {sT0}
                ''')
                self.flag_store(vA3, slow=True)
            xr = []
            for sp in range(4):
                xr.append(a(f'ds_read_b128 {vr(X+4*(4*q+sp),4)}, v{XR+sp} offset:{(q%4)*4096}'))
            wl = {}
            wl[0] = (self.trw(WB, 4*q, 1), self.trw(WB+4, 4*q, 2))
            for sp in range(4):
                s = 4*q + sp
                if sp < 3:
                    b = WB + 8*((sp+1) % 2)
                    wl[sp+1] = (self.trw(b, s+1, 1), self.trw(b+4, s+1, 2))
                b = WB + 8*(sp % 2)
                a.wait(xr[3] if sp == 0 else None, wl[sp][1])
                if sp == 0 and q < 4:
                    xseq[q+4] = xdma(q+4)
                ck = '0' if s == 0 else vr(accK, 16)
                cv = '0' if s == 0 else vr(accV, 16)
                a(f'{MF32} {vr(accK,16)}, {vr(b,4)}, {vr(X+4*s,4)}, {ck}')
                a(f'{MF16} {vr(CS,4)}, {vr(PO,4)}, {vr(b,4)}, {"0" if s == 0 else vr(CS,4)}')
                a(f'{MF32} {vr(accV,16)}, {vr(X+4*s,4)}, {vr(b+4,4)}, {cv}')
                a(f'{MF16} {vr(CS+4,4)}, {vr(PO,4)}, {vr(b+4,4)}, {"0" if s == 0 else vr(CS+4,4)}')
        self.stamp('kv1')
        self.ext_w(f'v{CS}', vA0, WB)
        a(f'v_accvgpr_write_b32 a{AEXT+8}, {vA0}')
        self.ext_w(f'v{CS+4}', vA0, WB)
        a(f'v_accvgpr_write_b32 a{AEXT+10}, {vA0}')
        a(f'v_accvgpr_write_b32 a{AEXT+9}, 0\nv_accvgpr_write_b32 a{AEXT+11}, 0')
        a(f'''
        s_lshl_b32 {sT0}, {sG}, 9
        s_add_u32 {sT0}, {sT0}, {F_X}
        v_lshrrev_b32 {vA3}, 4, {vLANE}
        v_lshlrev_b32 {vA3}, 7, {vA3}
        v_and_b32 {vA2}, 15, {vLANE}
        v_lshl_add_u32 {vA3}, {vA2}, 2, {vA3}
        v_add_u32 {vA3}, {sT0}, {vA3}
        ''')
        self.poll(vA3, shift=3)
        a(f'''
        v_and_b32 {vA5}, 7, {vA5}
        v_cmp_ne_u32 vcc, {sXCC}, {vA5}
        s_nop 0
        s_cmp_eq_u64 vcc, 0
        s_cselect_b32 {sMODE}, 1, 0
        s_mov_b32 {sT5}, 0
        ''')
        sl = self.stats_load(sT5, WB)
        a.wait(sl)
        for o in self.stats_ops(WB, False):
            a(o)
        a('s_barrier')

    def pattern_ones(self, PO):
        a = self.a
        a(f'''
        v_bfe_u32 {vA2}, {vLANE}, 2, 1
        v_bfe_u32 {vA3}, {vLANE}, 4, 1
        v_cmp_eq_u32 vcc, {vA2}, {vA3}
        v_mov_b32 {vA2}, {sONE2}
        v_cndmask_b32 v{PO}, 0, {vA2}, vcc
        v_cndmask_b32 v{PO+1}, 0, {vA2}, vcc
        v_cndmask_b32 v{PO+2}, 0, {vA2}, vcc
        v_cndmask_b32 v{PO+3}, 0, {vA2}, vcc
        ''')

    def xload(self, inst_sgpr, statdst):
        a = self.a
        a(f'''
        s_lshl_b32 {sT0}, {sG}, 2
        s_add_u32 {sT0}, {sT0}, {sW}
        s_lshl_b32 {sT0}, {sT0}, 7
        s_lshl_b32 {sT1}, {inst_sgpr}, 13
        s_add_u32 {sT0}, {sT0}, {sT1}
        s_add_u32 {sT0}, {sT0}, {F_X}
        v_and_b32 {vA3}, 15, {vLANE}
        v_lshlrev_b32 {vA3}, 2, {vA3}
        v_add_u32 {vA3}, {sT0}, {vA3}
        s_lshl_b32 {sT2}, {inst_sgpr}, 17
        s_add_u32 {sT2}, {sT2}, {sGB}
        s_lshl_b32 {sT1}, {sW}, 15
        s_add_u32 {sT2}, {sT2}, {sT1}
        s_add_u32 {sT2}, {sT2}, {XF - 0x20000 + 4096}
        v_add_u32 {vA1}, {sT2}, {vL16}
        ''' .replace(str(XF - 0x20000 + 4096), hex((XF - 0x20000 + 4096) & 0xffffffff)))
        self.poll(vA3)
        self.stamp('xflag')
        sl = self.stats_load(inst_sgpr, statdst)
        seqs = []
        for s in range(32):
            if s % 8 == 0 and s > 0:
                a(f'v_add_u32 {vA1}, 8192, {vA1}')
            seqs.append(a(f'global_load_dwordx4 {vr(X+4*s,4)}, {vA1}, {sWS} offset:{(s%8)*1024-4096} sc1'))
        return sl, seqs

    def p1_l2(self):
        a = self.a
        WB = ACC + 48
        SD = 232
        accK, accV = ACC, ACC + 16
        a.wait_all()
        a('s_barrier')
        a(f's_mov_b32 {sT5}, 2')
        sl, xs = self.xload(sT5, SD)
        wl = {}
        for s in range(2):
            b = WB + 8*(s % 3)
            wl[s] = (self.trw(b, s, 1), self.trw(b+4, s, 2))
        a.wait(sl)
        so = self.stats_ops(SD, False)
        for s in range(32):
            b = WB + 8*(s % 3)
            a.wait(xs[s], wl[s][1])
            ck = '0' if s == 0 else vr(accK, 16)
            cv = '0' if s == 0 else vr(accV, 16)
            a(f'{MF32} {vr(accK,16)}, {vr(b,4)}, {vr(X+4*s,4)}, {ck}')
            if s + 2 < 32:
                b2 = WB + 8*((s+2) % 3)
                w0 = self.trw(b2, s+2, 1)
            for o in so[:2]:
                a(o)
            so = so[2:]
            a(f'{MF32} {vr(accV,16)}, {vr(X+4*s,4)}, {vr(b+4,4)}, {cv}')
            if s + 2 < 32:
                wl[s+2] = (w0, self.trw(b2+4, s+2, 2))
        assert not so
        self.stamp('kv2')

    def p1_common(self):
        a = self.a
        accK, accV, accQ = ACC, ACC + 16, ACC + 32
        WB = ACC + 48
        PO = 220
        CS = 224
        RR = 228
        a(f'{MF32} {vr(accK,16)}, {ar(AEXT+8,4)}, {vr(XE+2,4)}, {vr(accK,16)}')
        a(f'{MF32} {vr(accV,16)}, {vr(XE,4)}, {ar(AEXT+8,4)}, {vr(accV,16)}')
        a(f'''
        s_lshl_b32 {sT0}, {sW}, 7
        s_add_u32 {sT0}, {sT0}, {RB}
        v_lshl_add_u32 {vA0}, {vT}, 2, {sT0}
        v_lshl_add_u32 {vA1}, {vH}, 4, {sT0}
        ds_write_b32 {vA0}, {vR}
        ''')
        for i in range(4):
            rr = a(f'ds_read_b128 {vr(RR+4*i,4)}, {vA1} offset:{32*i}')
        self.pattern_ones(PO)
        wl = {}
        for s in range(2):
            wl[s] = self.trw(WB + 4*(s % 3), s, 0)
        ep = []
        for j in range(16):
            ep.append(f'v_mul_f32 v{accK+j}, v{accK+j}, {vR}')
        for j in range(8):
            ep.append(f'v_cvt_pk_bf16_f32 v{accK+j}, v{accK+2*j}, v{accK+2*j+1}')
        ep.append(('wait', rr))
        for j in range(16):
            ep.append(f'v_mul_f32 v{accV+j}, v{accV+j}, v{RR+j}')
        for j in range(8):
            ep.append(f'v_cvt_pk_bf16_f32 v{accK+8+j}, v{accV+2*j}, v{accV+2*j+1}')
        ep.append(('call', self.kv_publish))
        for s in range(32):
            b = WB + 4*(s % 3)
            a.wait(wl[s])
            a(f'{MF32} {vr(accQ,16)}, {vr(b,4)}, {vr(X+4*s,4)}, {"0" if s == 0 else vr(accQ,16)}')
            if s + 2 < 32:
                wl[s+2] = self.trw(WB + 4*((s+2) % 3), s+2, 0)
            a(f'{MF16} {vr(CS,4)}, {vr(PO,4)}, {vr(b,4)}, {"0" if s == 0 else vr(CS,4)}')
            if s >= 1:
                for o in ep[:6]:
                    self.do(o)
                ep = ep[6:]
        assert not ep
        E = WB
        self.ext_w(f'v{CS}', f'v{E}', RR)
        a(f'v_mov_b32 v{E+1}, 0\nv_mov_b32 v{E+2}, 0\nv_mov_b32 v{E+3}, 0')
        a(f'{MF32} {vr(accQ,16)}, {vr(E,4)}, {vr(XE+2,4)}, {vr(accQ,16)}')
        a(f'v_mul_f32 {vA0}, {f2h(0.25*math.log2(math.e))}, {vR}')
        a.wait(self.kvst)
        a(f'''
        s_lshl_b32 {sT0}, {sG}, 4
        s_add_u32 {sT0}, {sT0}, {sM}
        s_lshl_b32 {sT0}, {sT0}, 2
        s_add_u32 {sT0}, {sT0}, {sW}
        s_lshl_b32 {sT0}, {sT0}, 7
        s_lshl_b32 {sT1}, {sL}, 17
        s_add_u32 {sT0}, {sT0}, {sT1}
        s_add_u32 {sT0}, {sT0}, {F_KV}
        v_mov_b32 {vA3}, {sT0}
        ''')
        self.flag_store(vA3, slow=True)
        for j in range(16):
            a(f'v_mul_f32 v{accQ+j}, v{accQ+j}, {vA0}')
        for j in range(8):
            a(f'v_cvt_pk_bf16_f32 v{accV+j}, v{accQ+2*j}, v{accQ+2*j+1}')
        self.stamp('q')
        a(f'''
        v_mov_b32 v{WB}, {sONE2}
        v_mov_b32 v{WB+1}, {sONE2}
        v_mov_b32 v{WB+2}, {sONE2}
        v_mov_b32 v{WB+3}, {sONE2}
        v_and_b32 {vA0}, 15, {vLANE}
        v_lshlrev_b32 {vA0}, 4, {vA0}
        v_add_u32 {vA0}, {ONES}, {vA0}
        ds_write_b128 {vA0}, {vr(WB,4)}
        ds_write_b128 {vA0}, {vr(WB,4)} offset:1024
        ''')
        skip = a.newlabel('nohalo')
        a(f'''
        s_add_u32 {sT2}, {sG}, {sTT}
        s_cmp_lt_u32 {sT2}, 2
        s_cbranch_scc1 {skip}
        s_sub_u32 {sT2}, {sT2}, 2
        s_lshl_b32 {sT0}, {sT2}, 4
        s_add_u32 {sT0}, {sT0}, {sM}
        s_lshl_b32 {sT0}, {sT0}, 2
        s_lshl_b32 {sT1}, {sFT}, 1
        s_add_u32 {sT0}, {sT0}, {sT1}
        s_lshl_b32 {sT0}, {sT0}, 7
        s_lshl_b32 {sT1}, {sL}, 17
        s_add_u32 {sT0}, {sT0}, {sT1}
        s_add_u32 {sT0}, {sT0}, {F_KV}
        v_and_b32 {vA3}, 1, {vLANE}
        v_lshlrev_b32 {vA3}, 7, {vA3}
        v_add_u32 {vA3}, {sT0}, {vA3}
        s_lshl_b32 {sT0}, {sT2}, 21
        s_lshl_b32 {sT1}, {sL}, 18
        s_add_u32 {sT0}, {sT0}, {sT1}
        s_lshl_b32 {sT1}, {sM}, 14
        s_add_u32 {sT0}, {sT0}, {sT1}
        s_lshl_b32 {sT1}, {sFT}, 13
        s_add_u32 {sT0}, {sT0}, {sT1}
        s_add_u32 {sT0}, {sT0}, {G0 + KV}
        v_add_u32 {vA1}, {sT0}, {vL16}
        ''')
        self.poll(vA3)
        a(f'''
        s_lshl_b32 {sT0}, {sW}, 13
        s_add_u32 m0, {sT0}, {LB}
        v_add_u32 {vA2}, 4096, {vA1}
        ''')
        for i in range(4):
            a(f'global_load_lds_dwordx4 {vA1}, {sWS} offset:{i*1024} sc1', count=False)
        a(f's_add_u32 m0, {sT0}, {LB+4096}\ns_nop 0')
        for i in range(4):
            a(f'global_load_lds_dwordx4 {vA2}, {sWS} offset:{i*1024} sc1', count=False)
        a.label(skip)
        sk2 = a.newlabel('nowt')
        a(f'''
        s_cmp_lg_u32 {sL}, 0
        s_cbranch_scc1 {sk2}
        s_lshl_b32 {sT0}, {sCT}, 11
        s_add_u32 {sT0}, {sT0}, {F_WT}
        v_and_b32 {vA3}, 15, {vLANE}
        v_lshlrev_b32 {vA3}, 7, {vA3}
        v_bfe_u32 {vA2}, {vLANE}, 4, 1
        v_lshl_add_u32 {vA3}, {vA2}, 14, {vA3}
        v_add_u32 {vA3}, {sT0}, {vA3}
        ''')
        self.poll(vA3)
        a.label(sk2)
        a.wait_all()
        a('s_barrier')
        self.stamp('halo')
        a(f'''
        s_mul_i32 {sT0}, {sM}, 0x1C000
        s_mul_i32 {sT1}, {sW}, {28*1024}
        s_add_u32 {sT0}, {sT0}, {sT1}
        s_add_u32 {sT0}, {sT0}, {W1T}
        v_add_u32 {vA1}, {sT0}, {vL16}
        ''')
        for i in range(28):
            if i % 4 == 0:
                a(f's_add_u32 m0, {sT1}, {i*1024}')
                if i:
                    a(f'v_add_u32 {vA1}, 4096, {vA1}')
                else:
                    a('s_nop 0')
            self.w1seq = a(f'global_load_lds_dwordx4 {vA1}, {sWS} offset:{(i%4)*1024} sc1')
        a(f'''
        s_lshl_b32 {sT0}, {sCT}, 16
        s_lshl_b32 {sT1}, {sW}, 14
        s_add_u32 {sT0}, {sT0}, {sT1}
        s_add_u32 {sT0}, {sT0}, {WOT + 4096}
        s_lshl_b32 {sT1}, {sFT}, 10
        s_add_u32 {sT2}, {sT0}, {sT1}
        s_xor_b32 {sT1}, {sT1}, 1024
        s_add_u32 {sT3}, {sT0}, {sT1}
        v_add_u32 {vA1}, {sT2}, {vL16}
        v_add_u32 {vA2}, {sT3}, {vL16}
        ''')
        for i in range(8):
            if i == 4:
                a(f'v_add_u32 {vA1}, 8192, {vA1}\nv_add_u32 {vA2}, 8192, {vA2}')
            a(f'global_load_dwordx4 {vr(X+8*i,4)}, {vA1}, {sWS} offset:{(i%4)*2048-4096} sc1')
            self.woseq = a(f'global_load_dwordx4 {vr(X+8*i+4,4)}, {vA2}, {sWS} offset:{(i%4)*2048-4096} sc1')

    def do(self, o):
        if isinstance(o, str):
            self.a(o)
        elif o[0] == 'wait':
            self.a.wait(*o[1:])
        elif o[0] == 'call':
            o[1]()

    def kv_publish(self):
        a = self.a
        K = ACC
        sk = a.newlabel('nolds')
        a(f'''
        s_lshl_b32 {sT0}, {sL}, 18
        s_add_u32 {sT0}, {sT0}, {sGB}
        s_lshl_b32 {sT1}, {sM}, 14
        s_add_u32 {sT0}, {sT0}, {sT1}
        s_lshl_b32 {sT1}, {sW}, 12
        s_add_u32 {sT0}, {sT0}, {sT1}
        s_add_u32 {sT0}, {sT0}, {KV}
        v_add_u32 {vA1}, {sT0}, {vL16}
        s_add_u32 {sT1}, {sT1}, {LB + 8*4096}
        v_add_u32 {vA2}, {sT1}, {vL16}
        ''')
        for i in range(4):
            self.kvst = a(f'global_store_dwordx4 {vA1}, {vr(K+4*i,4)}, {sWS} offset:{i*1024} sc1')
        a(f's_cmp_eq_u32 {sW}, 3\ns_cbranch_scc1 {sk}')
        for i in range(4):
            a(f'ds_write_b128 {vA2}, {vr(K+4*i,4)} offset:{i*1024}', count=False)
        a.label(sk)

    def attention(self):
        a = self.a
        KO = ACC
        Q = ACC + 16
        NM = [96, 112]
        S = [128, 144]
        O = [184, 200]
        KBUF = [216, 220]
        VB = [224, 232]
        MX = ['v240', 'v241']
        vBIG = 'v242'
        vK, vV0, vV1, vI0, vI1 = 'v243', 'v244', 'v245', 'v246', 'v247'
        vKs = 'v248'
        sN = 's57'
        sIT = 's58'
        m = lambda j: f's[{MASK0+2*j}:{MASK0+2*j+1}]'
        a(f'''
        s_lshl_b32 {sT0}, {sG}, 2
        s_sub_i32 {sT0}, 8, {sT0}
        s_add_u32 {sT1}, {sW}, 1
        s_max_i32 {sT0}, {sT0}, {sT1}
        s_add_u32 {sN}, {sW}, 8
        s_sub_u32 {sN}, {sN}, {sT0}
        s_lshl_b32 {sT0}, {sT0}, 12
        s_add_u32 {sT0}, {sT0}, {LB - 4096}
        v_add_u32 {vKs}, {sT0}, {vL16}
        v_mov_b32 {vBIG}, {hex(BIGNEG)}
        ''')
        for j in range(16):
            a(f'v_cndmask_b32 v{NM[0]+j}, {vBIG}, 0, {m(j)}')
        for j in range(16):
            a(f'v_cndmask_b32 v{NM[1]+j}, 0, {vBIG}, {m(j)}')

        def maxops(h, first=False):
            o = []
            s = S[h]
            if first:
                o.append(f'v_max3_f32 {MX[h]}, v{s}, v{s+1}, v{s+2}')
                for j in range(3, 15, 2):
                    o.append(f'v_max3_f32 {MX[h]}, v{s+j}, v{s+j+1}, {MX[h]}')
                o.append(f'v_max_f32 {MX[h]}, v{s+15}, {MX[h]}')
            else:
                for j in range(0, 16, 2):
                    o.append(f'v_max3_f32 {MX[h]}, v{s+j}, v{s+j+1}, {MX[h]}')
            return o
        a(f'v_mov_b32 {vK}, {vKs}')
        a(f'v_mov_b32 {MX[1]}, {vBIG}')
        k0 = a(f'ds_read_b128 {vr(KBUF[0],4)}, {vK}')
        k1 = a(f'ds_read_b128 {vr(KBUF[1],4)}, {vK} offset:1024')
        a(f'{MF32} {vr(S[0],16)}, {vr(KO,4)}, {vr(Q,4)}, {vr(NM[0],16)}')
        a(f'{MF32} {vr(S[1],16)}, {vr(KO+4,4)}, {vr(Q+4,4)}, {vr(NM[0],16)}')
        for o in maxops(0, True):
            a(o)

        def p1_stage(C):
            a('s_waitcnt lgkmcnt(0)')
            a(f'{MF32} {vr(S[0],16)}, {vr(KBUF[0],4)}, {vr(Q,4)}, {C}')
            a(f'ds_read_b128 {vr(KBUF[0],4)}, {vK} offset:4096')
            for o in maxops(1):
                a(o)
            a(f'{MF32} {vr(S[1],16)}, {vr(KBUF[1],4)}, {vr(Q+4,4)}, {C}')
            a(f'ds_read_b128 {vr(KBUF[1],4)}, {vK} offset:5120')
            a(f'v_add_u32 {vK}, 4096, {vK}')
            for o in maxops(0):
                a(o)
        noold = a.newlabel('noold')
        j1 = a.newlabel('j1')
        a(f's_cmp_lt_u32 {sG}, 2\ns_cbranch_scc1 {noold}')
        p1_stage(vr(NM[1], 16))
        a(f's_branch {j1}')
        a.label(noold)
        a('s_waitcnt lgkmcnt(0)')
        a(f'ds_read_b128 {vr(KBUF[0],4)}, {vK} offset:4096')
        a(f'ds_read_b128 {vr(KBUF[1],4)}, {vK} offset:5120')
        a(f'v_add_u32 {vK}, 4096, {vK}')
        a.label(j1)
        a.pad()
        lp = a.newlabel('a1')
        dn = a.newlabel('a1d')
        a(f's_mov_b32 {sIT}, {sN}\ns_cmp_eq_u32 {sN}, 0\ns_cbranch_scc1 {dn}')
        a.label(lp)
        p1_stage('0')
        a(f's_sub_u32 {sIT}, {sIT}, 1\ns_cmp_lg_u32 {sIT}, 0\ns_cbranch_scc1 {lp}')
        a.label(dn)
        a.pad()
        for o in maxops(1):
            a(o)
        for h in range(2):
            a(f'v_mov_b32 {vA0}, {MX[h]}')
            a(f'v_permlane32_swap_b32 {MX[h]}, {vA0}')
            a(f'v_max_f32 {MX[h]}, {MX[h]}, {vA0}')
            a(f'v_sub_f32 {MX[h]}, 0, {MX[h]}')
        self.stamp('att1')
        for h in range(2):
            for j in range(16):
                a(f'v_mov_b32 v{NM[h]+j}, {MX[h]}')
        a(f'''
        s_waitcnt lgkmcnt(0)
        v_mov_b32 {vK}, {vKs}
        v_and_b32 {vA0}, 15, {vLANE}
        v_lshlrev_b32 {vA0}, 4, {vA0}
        v_add_u32 {vA0}, {ONES}, {vA0}
        v_add_u32 {vA1}, 2048, {vKs}
        v_mov_b32 {vA2}, 4096
        v_cndmask_b32 {vV0}, {vA1}, {vA0}, {sN16}
        v_cndmask_b32 {vV1}, {vA0}, {vA1}, {sN16}
        v_cndmask_b32 {vI0}, {vA2}, 0, {sN16}
        v_cndmask_b32 {vI1}, 0, {vA2}, {sN16}
        v_mov_b32 {vA2}, {sONE2}
        ds_read_b128 {vr(KBUF[0],4)}, {vK}
        ds_read_b128 {vr(KBUF[1],4)}, {vK} offset:1024
        ''')
        for j in range(8):
            a(f'v_cndmask_b32 v{VB[0]+j}, v{KO+8+j}, {vA2}, {sN16}')
            a(f'v_cndmask_b32 v{VB[1]+j}, {vA2}, v{KO+8+j}, {sN16}')

        def expops(h, first):
            s = S[h]
            for j in range(16):
                a(f'v_exp_f32 v{s+j}, v{s+j}')
                if j % 2 == 1 and j >= 3:
                    jj = (j - 3) // 2
                    a(f'v_cvt_pk_bf16_f32 v{s+jj}, v{s+2*jj}, v{s+2*jj+1}')
            a(f'v_cvt_pk_bf16_f32 v{s+7}, v{s+14}, v{s+15}')
            a(f'{MF32} {vr(O[h],16)}, {vr(VB[h],4)}, {vr(s,4)}, {"0" if first else vr(O[h],16)}')
            a(f'{MF32} {vr(O[h],16)}, {vr(VB[h]+4,4)}, {vr(s+4,4)}, {vr(O[h],16)}')
        for h in range(2):
            for j in range(16):
                a(f'v_cndmask_b32 v{S[h]+j}, {vBIG}, {MX[h]}, {m(j)}')
            a(f'{MF32} {vr(S[h],16)}, {vr(KO+4*h,4)}, {vr(Q+4*h,4)}, {vr(S[h],16)}')
        expops(0, True)
        for j in range(16):
            a(f'v_mov_b32 v{O[1]+j}, 0')

        def p2_stage(old):
            a(f'ds_read_b128 {vr(VB[0],4)}, {vV0}')
            a(f'ds_read_b128 {vr(VB[0]+4,4)}, {vV0} offset:1024')
            if old:
                for j in range(16):
                    a(f'v_cndmask_b32 v{S[0]+j}, {MX[0]}, {vBIG}, {m(j)}')
            a('s_waitcnt lgkmcnt(2)')
            a(f'{MF32} {vr(S[0],16)}, {vr(KBUF[0],4)}, {vr(Q,4)}, {vr(S[0] if old else NM[0],16)}')
            a(f'ds_read_b128 {vr(KBUF[0],4)}, {vK} offset:4096')
            a(f'v_add_u32 {vV0}, {vI0}, {vV0}')
            expops(1, False)
            a(f'ds_read_b128 {vr(VB[1],4)}, {vV1}')
            a(f'ds_read_b128 {vr(VB[1]+4,4)}, {vV1} offset:1024')
            if old:
                for j in range(16):
                    a(f'v_cndmask_b32 v{S[1]+j}, {MX[1]}, {vBIG}, {m(j)}')
            a(f'{MF32} {vr(S[1],16)}, {vr(KBUF[1],4)}, {vr(Q+4,4)}, {vr(S[1] if old else NM[1],16)}')
            a(f'ds_read_b128 {vr(KBUF[1],4)}, {vK} offset:5120')
            a(f'v_add_u32 {vV1}, {vI1}, {vV1}')
            a(f'v_add_u32 {vK}, 4096, {vK}')
            a('s_waitcnt lgkmcnt(4)')
            expops(0, False)
        noold = a.newlabel('noold')
        j1 = a.newlabel('j2')
        a(f's_cmp_lt_u32 {sG}, 2\ns_cbranch_scc1 {noold}')
        p2_stage(True)
        a(f's_branch {j1}')
        a.label(noold)
        a(f'''
        s_waitcnt lgkmcnt(0)
        ds_read_b128 {vr(KBUF[0],4)}, {vK} offset:4096
        ds_read_b128 {vr(KBUF[1],4)}, {vK} offset:5120
        v_add_u32 {vK}, 4096, {vK}
        v_add_u32 {vV0}, {vI0}, {vV0}
        v_add_u32 {vV1}, {vI1}, {vV1}
        ''')
        a.label(j1)
        a.pad()
        lp = a.newlabel('a2')
        dn = a.newlabel('a2d')
        a(f's_mov_b32 {sIT}, {sN}\ns_cmp_eq_u32 {sN}, 0\ns_cbranch_scc1 {dn}')
        a.label(lp)
        p2_stage(False)
        a(f's_sub_u32 {sIT}, {sIT}, 1\ns_cmp_lg_u32 {sIT}, 0')
        a.pad()
        a(f's_cbranch_scc1 {lp}')
        a.label(dn)
        a('s_waitcnt lgkmcnt(0)')
        a.pad()
        expops(1, False)
        a(f'v_rcp_f32 {vA0}, v{O[0]+8}')
        for j in range(8):
            a(f'v_mul_f32 v{O[0]+j}, v{O[0]+j}, {vA0}')
        for j in range(4):
            a(f'v_cvt_pk_bf16_f32 v{O[0]+j}, v{O[0]+2*j}, v{O[0]+2*j+1}')
        a(f'''
        s_lshl_b32 {sT0}, {sL}, 17
        s_add_u32 {sT0}, {sT0}, {sGB}
        s_lshl_b32 {sT1}, {sW}, 15
        s_add_u32 {sT0}, {sT0}, {sT1}
        s_lshl_b32 {sT1}, {sM}, 11
        s_add_u32 {sT0}, {sT0}, {sT1}
        s_add_u32 {sT0}, {sT0}, {OF}
        v_add_u32 {vA1}, {sT0}, {vL16}
        ''')
        a(f'v_rcp_f32 {vA0}, v{O[1]}')
        for j in range(8):
            a(f'v_mul_f32 v{O[1]+8+j}, v{O[1]+8+j}, {vA0}')
        for j in range(4):
            a(f'v_cvt_pk_bf16_f32 v{O[0]+4+j}, v{O[1]+8+2*j}, v{O[1]+8+2*j+1}')
        st = self.stores([f'global_store_dwordx4 {vA1}, {vr(O[0],4)}, {sWS}',
                          f'global_store_dwordx4 {vA1}, {vr(O[0]+4,4)}, {sWS} offset:1024'])
        self.oh_flag(F_O, st)
        self.stamp('att2')

    def oh_flag(self, F, st):
        a = self.a
        a(f'''
        s_lshl_b32 {sT0}, {sG}, 1
        s_add_u32 {sT0}, {sT0}, {sTT}
        s_lshl_b32 {sT0}, {sT0}, 2
        s_lshr_b32 {sT1}, {sM}, 2
        s_add_u32 {sT0}, {sT0}, {sT1}
        s_lshl_b32 {sT0}, {sT0}, 7
        s_and_b32 {sT1}, {sM}, 3
        s_lshl_b32 {sT1}, {sT1}, 1
        s_add_u32 {sT1}, {sT1}, {sFT}
        s_lshl_b32 {sT1}, {sT1}, 2
        s_add_u32 {sT0}, {sT0}, {sT1}
        s_lshl_b32 {sT1}, {sL}, 14
        s_add_u32 {sT0}, {sT0}, {sT1}
        s_add_u32 {sT0}, {sT0}, {F}
        v_mov_b32 {vA3}, {sT0}
        ''')
        a.wait(st)
        self.flag_store(vA3)

    def oh_poll(self, F):
        a = self.a
        a(f'''
        s_lshl_b32 {sT0}, {sG}, 1
        s_add_u32 {sT0}, {sT0}, {sRH}
        s_lshl_b32 {sT0}, {sT0}, 2
        s_add_u32 {sT0}, {sT0}, {sW}
        s_lshl_b32 {sT0}, {sT0}, 7
        s_lshl_b32 {sT1}, {sL}, 14
        s_add_u32 {sT0}, {sT0}, {sT1}
        s_add_u32 {sT0}, {sT0}, {F}
        v_and_b32 {vA3}, 7, {vLANE}
        v_lshlrev_b32 {vA3}, 2, {vA3}
        v_add_u32 {vA3}, {sT0}, {vA3}
        ''')
        self.poll(vA3)

    def unpack_res(self, dst):
        a = self.a
        for i in range(8):
            a(f'v_lshlrev_b32 v{dst+2*i}, 16, v{RES+i}')
            a(f'v_and_b32 v{dst+2*i+1}, 0xffff0000, v{RES+i}')

    def gemm64(self, nk, wreg, AB, R, tile_stride, base_lines):
        a = self.a
        a(base_lines)
        a(f'''
        s_mul_i32 {sT1}, {sTT}, {tile_stride}
        s_add_u32 {sT2}, {sT0}, {sT1}
        s_sub_u32 {sT1}, {tile_stride}, {sT1}
        s_add_u32 {sT3}, {sT0}, {sT1}
        s_add_u32 {sT2}, {sT2}, 4096
        s_add_u32 {sT3}, {sT3}, 4096
        v_add_u32 {vA1}, {sT2}, {vL16}
        v_add_u32 {vA2}, {sT3}, {vL16}
        ''')
        seqs = {}

        def ld(k):
            if k % 8 == 0 and k > 0:
                a(f'v_add_u32 {vA1}, 8192, {vA1}\nv_add_u32 {vA2}, 8192, {vA2}')
            b = AB + 8*(k % R)
            s0 = a(f'global_load_dwordx4 {vr(b,4)}, {vA1}, {sWS} offset:{(k%8)*1024-4096} sc1')
            s1 = a(f'global_load_dwordx4 {vr(b+4,4)}, {vA2}, {sWS} offset:{(k%8)*1024-4096} sc1')
            seqs[k] = (s0, s1)
        for k in range(min(R, nk)):
            ld(k)
        for k in range(nk):
            b = AB + 8*(k % R)
            c = lambda i: '0' if (k == 0 and i > 0) else vr(ACC+16*i, 16)
            a.wait(seqs[k][0])
            a(f'{MF32} {vr(ACC,16)}, {wreg(k,0)}, {vr(b,4)}, {c(0)}')
            a(f'{MF32} {vr(ACC+16,16)}, {wreg(k,1)}, {vr(b,4)}, {c(1)}')
            a.wait(seqs[k][1])
            a(f'{MF32} {vr(ACC+32,16)}, {wreg(k,0)}, {vr(b+4,4)}, {c(2)}')
            a(f'{MF32} {vr(ACC+48,16)}, {wreg(k,1)}, {vr(b+4,4)}, {c(3)}')
            if k + R < nk:
                ld(k + R)

    def reduce64(self, TMP, pre_barrier):
        a = self.a
        if pre_barrier:
            a('s_barrier')
        for i in range(1, 4):
            a(f'''
            s_xor_b32 {sT0}, {sW}, {i}
            s_mul_i32 {sT0}, {sT0}, {3*4096}
            s_add_u32 {sT0}, {sT0}, {LB + (i-1)*4096}
            v_add_u32 {vA0}, {sT0}, {vL16}
            ''')
            for j in range(4):
                a(f'ds_write_b128 {vA0}, {vr(ACC+16*i+4*j,4)} offset:{j*1024}')
        a(f'''
        s_mul_i32 {sT0}, {sW}, {3*4096}
        s_add_u32 {sT0}, {sT0}, {LB}
        v_add_u32 {vA0}, {sT0}, {vL16}
        ''')
        a.wait_all()
        a('s_barrier')
        rd = []
        for i in range(12):
            rd.append(a(f'ds_read_b128 {vr(TMP+4*i,4)}, {vA0} offset:{i*1024}'))
        for i in range(12):
            a.wait(rd[i])
            for j in range(4):
                r = ACC + (i % 4)*4 + j
                a(f'v_add_f32 v{r}, v{r}, v{TMP+4*i+j}')
        for i in range(8):
            a(f'v_cvt_pk_bf16_f32 v{RES+i}, v{ACC+2*i}, v{ACC+2*i+1}')

    def x_publish(self, inst_sgpr):
        a = self.a
        a(f'''
        s_lshl_b32 {sT0}, {inst_sgpr}, 17
        s_add_u32 {sT0}, {sT0}, {sGB}
        s_lshl_b32 {sT1}, {sRH}, 1
        s_add_u32 {sT1}, {sT1}, {sTT}
        s_lshl_b32 {sT1}, {sT1}, 15
        s_add_u32 {sT0}, {sT0}, {sT1}
        s_lshl_b32 {sT1}, {sCT}, 1
        s_add_u32 {sT1}, {sT1}, {sFT}
        s_lshl_b32 {sT1}, {sT1}, 11
        s_add_u32 {sT0}, {sT0}, {sT1}
        s_sub_u32 {sT0}, {sT0}, {0x20000 - XF}
        v_add_u32 {vA4}, {sT0}, {vL16}
        s_lshl_b32 {sT4}, {inst_sgpr}, 18
        ''')
        stl = self.stats_publish(sT4)
        st = self.stores([f'global_store_dwordx4 {vA4}, {vr(RES,4)}, {sWS}',
                          f'global_store_dwordx4 {vA4}, {vr(RES+4,4)}, {sWS} offset:1024', stl])
        a(f's_lshl_b32 {sT4}, {inst_sgpr}, 13')
        self.xflag_addr(vA3, sT4)
        a.wait(st)
        self.flag_store(vA3)

    def p2(self):
        a = self.a
        self.unpack_res(ACC)
        self.oh_poll(F_O)
        self.stamp('oflag')
        self.gemm64(8, lambda k, j: vr(X + 8*k + 4*j, 4), 96, 8, 0x8000, f'''
        s_lshl_b32 {sT0}, {sL}, 17
        s_add_u32 {sT0}, {sT0}, {sGB}
        s_lshl_b32 {sT1}, {sRH}, 16
        s_add_u32 {sT0}, {sT0}, {sT1}
        s_lshl_b32 {sT1}, {sW}, 13
        s_add_u32 {sT0}, {sT0}, {sT1}
        s_add_u32 {sT0}, {sT0}, {OF}
        ''')
        self.stamp('p2mm')
        self.reduce64(96, True)
        a(f's_lshl_b32 {sT5}, {sL}, 1\ns_add_u32 {sT5}, {sT5}, 1')
        self.x_publish(sT5)
        self.stamp('p2')

    def p3(self):
        a = self.a
        WA = ['v232', 'v233', 'v234', 'v235']
        a(f'''
        v_mov_b32 {WA[0]}, {vL16}
        v_add_u32 {WA[1]}, 57344, {vL16}
        v_and_b32 {vA0}, 15, {vLANE}
        v_lshl_add_u32 {vA0}, {vH}, 4, {vA0}
        v_lshlrev_b32 {WA[2]}, 4, {vA0}
        v_add_u32 {WA[3]}, 57344, {WA[2]}
        ''')

        def wr(dst, s, c):
            b = WA[(2 if c == 3 else 0) + (1 if s >= 16 else 0)]
            return a(f'ds_read_b128 {vr(dst,4)}, {b} offset:{(s%16)*3584 + c*1024}')
        sk = a.newlabel('noext')
        a(f's_cmp_lg_u32 {sL}, 0\ns_cbranch_scc1 {sk}')
        PO, CS, WB = ACC, ACC + 4, ACC + 8
        self.pattern_ones(PO)
        a(f'''
        s_cmp_eq_u32 {sW}, 3
        s_cselect_b64 vcc, -1, 0
        s_lshl_b32 {sT0}, {sW}, 10
        v_cndmask_b32 {vA0}, {WA[0]}, {WA[2]}, vcc
        v_add_u32 {vA0}, {sT0}, {vA0}
        v_add_u32 {vA1}, 57344, {vA0}
        v_and_b32 {vA2}, 15, {vLANE}
        v_cndmask_b32 {vA2}, {vT}, {vA2}, vcc
        s_mul_i32 {sT0}, {sM}, 224
        s_lshl_b32 {sT1}, {sW}, 6
        s_add_u32 {sT0}, {sT0}, {sT1}
        v_lshl_add_u32 {vA2}, {vA2}, 1, {sT0}
        ''')
        bl = a(f'global_load_ushort {vA4}, {vA2}, {sB1}')
        rd = {}
        for s in range(8):
            rd[s] = a(f'ds_read_b128 {vr(WB+4*(s%8),4)}, {vA0} offset:{s*3584}')
        for s in range(32):
            a.wait(rd[s])
            a(f'{MF16} {vr(CS,4)}, {vr(PO,4)}, {vr(WB+4*(s%8),4)}, {"0" if s == 0 else vr(CS,4)}')
            if s + 8 < 32:
                s2 = s + 8
                rd[s2] = a(f'ds_read_b128 {vr(WB+4*(s2%8),4)}, {vA0 if s2 < 16 else vA1} offset:{(s2%16)*3584}')
        self.ext_w(f'v{CS}', f'v{WB}', WB+2)
        a.wait(bl)
        a(f'''
        v_lshl_or_b32 v{WB+1}, {vA4}, 16, {vA4}
        s_mul_i32 {sT0}, {sW}, {3*4096}
        s_add_u32 {sT0}, {sT0}, {LB}
        v_lshl_add_u32 {vA0}, {vLANE}, 3, {sT0}
        ds_write_b64 {vA0}, {vr(WB,2)}
        v_lshlrev_b32 {vA0}, 3, {vLANE}
        v_add_u32 {vA0}, {LB}, {vA0}
        s_waitcnt lgkmcnt(0)
        s_barrier
        ''')
        for c in range(4):
            a(f'ds_read_b64 {ar(AEXT+2*c,2)}, {vA0} offset:{c*3*4096}')
        a('s_waitcnt lgkmcnt(0)')
        a.label(sk)
        a.pad()
        SD = 236
        WB = ACC + 48
        GT = 236
        a(f's_lshl_b32 {sT5}, {sL}, 1\ns_add_u32 {sT5}, {sT5}, 1')
        sl, xs = self.xload(sT5, SD)
        sk = a.newlabel('now2')
        a(f'''
        s_cmp_lg_u32 {sL}, 0
        s_cbranch_scc1 {sk}
        s_mul_i32 {sT0}, {sCT}, 0x38000
        s_mul_i32 {sT1}, {sW}, {28*2048}
        s_add_u32 {sT0}, {sT0}, {sT1}
        s_add_u32 {sT0}, {sT0}, {W2T + 4096}
        s_lshl_b32 {sT1}, {sFT}, 10
        s_add_u32 {sT2}, {sT0}, {sT1}
        s_xor_b32 {sT1}, {sT1}, 1024
        s_add_u32 {sT3}, {sT0}, {sT1}
        v_add_u32 {vA1}, {sT2}, {vL16}
        v_add_u32 {vA2}, {sT3}, {vL16}
        ''')
        a.label(sk)
        acc = [ACC, ACC + 16, ACC + 32, ACC]
        a(f'''
        s_mul_i32 {sT0}, {sL}, 0x70000
        s_add_u32 {sT0}, {sT0}, {sGB}
        s_mul_i32 {sT1}, {sW}, {112*1024}
        s_add_u32 {sT0}, {sT0}, {sT1}
        s_mul_i32 {sT1}, {sM}, {7*1024}
        s_add_u32 {sT0}, {sT0}, {sT1}
        s_add_u32 {sT0}, {sT0}, {HF + 4096}
        v_add_u32 {vA3}, {sT0}, {vL16}
        ''')

        def gelu(c):
            A = acc[c]
            n = 8 if c == 3 else 16
            o = []
            for j0 in range(0, n, 4):
                t = [f'v{GT+i}' for i in range(4)]
                x = [f'v{A+j0+i}' for i in range(4)]
                for i in range(4):
                    o.append(f'v_mul_f32 {t[i]}, {x[i]}, {x[i]}')
                for i in range(4):
                    o.append(f'v_fma_f32 {t[i]}, {t[i]}, {vK1}, {vK0}')
                for i in range(4):
                    o.append(f'v_mul_f32 {t[i]}, {t[i]}, {x[i]}')
                for i in range(4):
                    o.append(f'v_exp_f32 {t[i]}, {t[i]}')
                for i in range(4):
                    o.append(f'v_fma_f32 {t[i]}, {t[i]}, {vS}, {vS}')
                for i in range(4):
                    o.append(f'v_rcp_f32 {t[i]}, {t[i]}')
                for i in range(4):
                    o.append(f'v_mul_f32 {t[i]}, {t[i]}, {x[i]}')
                P = GT + 4 + (c % 2)*8
                o.append(f'v_cvt_pk_bf16_f32 v{P+j0//2}, {t[0]}, {t[1]}')
                o.append(f'v_cvt_pk_bf16_f32 v{P+j0//2+1}, {t[2]}, {t[3]}')

            def st():
                P = GT + 4 + (c % 2)*8
                ls = [f'global_store_dwordx4 {vA3}, {vr(P,4)}, {sWS} offset:{2*c*1024-4096}']
                if c < 3:
                    ls.append(f'global_store_dwordx4 {vA3}, {vr(P+4,4)}, {sWS} offset:{(2*c+1)*1024-4096}')
                self.hst = self.stores(ls)
            o.append(('call', st))
            return o

        def ext(c):
            xe = XE + 2 if c % 2 == 0 else XE
            a(f'{MF32} {vr(acc[c],16)}, {ar(AEXT+4*(c//2),4)}, {vr(xe,4)}, {vr(acc[c],16)}')
        wl = {}
        for s in range(2):
            b = WB + 8*(s % 3)
            wl[s] = (wr(b, s, 0), wr(b+4, s, 1))
        a.wait(sl)
        so = self.stats_ops(SD, True)
        for s in range(32):
            b = WB + 8*(s % 3)
            a.wait(xs[s], wl[s][1])
            a(f'{MF32} {vr(acc[0],16)}, {vr(b,4)}, {vr(X+4*s,4)}, {"0" if s == 0 else vr(acc[0],16)}')
            b2 = WB + 8*((s+2) % 3)
            if s + 2 < 32:
                w0 = wr(b2, s+2, 0)
            for o in so[:2]:
                a(o)
            so = so[2:]
            a(f'{MF32} {vr(acc[1],16)}, {vr(b+4,4)}, {vr(X+4*s,4)}, {"0" if s == 0 else vr(acc[1],16)}')
            if s + 2 < 32:
                wl[s+2] = (w0, wr(b2+4, s+2, 1))
        assert not so
        ext(0)
        ext(1)
        self.stamp('p3a')
        sk = a.newlabel('now2')
        a(f's_cmp_lg_u32 {sL}, 0\ns_cbranch_scc1 {sk}')
        for i in range(28):
            if i % 4 == 0 and i > 0:
                a(f'v_add_u32 {vA1}, 8192, {vA1}\nv_add_u32 {vA2}, 8192, {vA2}')
            a(f'global_load_dwordx4 {ar(8*i,4)}, {vA1}, {sWS} offset:{(i%4)*2048-4096} sc1', count=False)
            a(f'global_load_dwordx4 {ar(8*i+4,4)}, {vA2}, {sWS} offset:{(i%4)*2048-4096} sc1', count=False)
        a.label(sk)

        def tilepass(c, ops):
            wl = {}
            for s in range(3):
                wl[s] = wr(WB + 4*(s % 4), s, c)
            per = -(-len(ops) // 31)
            for s in range(32):
                a.wait(wl[s])
                a(f'{MF32} {vr(acc[c],16)}, {vr(WB+4*(s%4),4)}, {vr(X+4*s,4)}, {"0" if s == 0 else vr(acc[c],16)}')
                if s + 3 < 32:
                    wl[s+3] = wr(WB + 4*((s+3) % 4), s+3, c)
                if s >= 1:
                    for o in ops[:per]:
                        self.do(o)
                    ops = ops[per:]
            assert not ops
            ext(c)
        tilepass(2, gelu(0) + gelu(1))
        self.stamp('p3b')
        tilepass(3, gelu(2))
        self.stamp('p3c')
        for o in gelu(3):
            self.do(o)
        self.oh_flag(F_H, self.hst)
        self.stamp('p3')
        a('s_barrier')
        sk = a.newlabel('nowq')
        a(f'''
        s_cmp_lg_u32 {sL}, 0
        s_cbranch_scc1 {sk}
        v_lshrrev_b32 {vA0}, 2, {vLANE}
        v_and_b32 {vA1}, 3, {vLANE}
        s_movk_i32 {sT0}, 3072
        v_mul_u32_u24 {vA2}, {sT0}, {vA0}
        v_lshl_add_u32 {vA2}, {vA1}, 4, {vA2}
        s_mul_i32 {sT0}, {sW}, 49152
        s_lshl_b32 {sT1}, {sM}, 6
        s_add_u32 {sT0}, {sT0}, {sT1}
        v_add_u32 {vA4}, {sT0}, {vA2}
        ''')
        save = a.vm
        for q in range(8):
            self.wqkv_dma(vA4, q, (1, 2, 0))
        a.vm = save
        a.label(sk)

    def p4(self):
        a = self.a
        BT = 96
        a(f'''
        s_lshl_b32 {sT0}, {sCT}, 7
        s_lshl_b32 {sT1}, {sFT}, 6
        s_add_u32 {sT0}, {sT0}, {sT1}
        v_lshl_add_u32 {vA0}, {vH}, 3, {sT0}
        ''')
        for i in range(4):
            bl = a(f'global_load_dwordx2 {vr(BT+2*i,2)}, {vA0}, {sB2} offset:{16*i}')
        self.unpack_res(ACC)
        a.wait(bl)
        for i in range(8):
            a(f'v_lshlrev_b32 {vA0}, 16, v{BT+i}')
            a(f'v_and_b32 {vA1}, 0xffff0000, v{BT+i}')
            a(f'v_add_f32 v{ACC+2*i}, v{ACC+2*i}, {vA0}')
            a(f'v_add_f32 v{ACC+2*i+1}, v{ACC+2*i+1}, {vA1}')
        self.oh_poll(F_H)
        self.stamp('hflag')
        self.gemm64(28, lambda k, j: ar(8*k + 4*j, 4), X, 16, 112*1024, f'''
        s_mul_i32 {sT0}, {sL}, 0x70000
        s_add_u32 {sT0}, {sT0}, {sGB}
        s_mul_i32 {sT1}, {sRH}, {2*112*1024}
        s_add_u32 {sT0}, {sT0}, {sT1}
        s_mul_i32 {sT1}, {sW}, {28*1024}
        s_add_u32 {sT0}, {sT0}, {sT1}
        s_add_u32 {sT0}, {sT0}, {HF}
        ''')
        self.stamp('p4mm')
        self.reduce64(96, False)
        fin = a.newlabel('fin')
        a(f's_cmp_lg_u32 {sL}, 0\ns_cbranch_scc1 {fin}')
        a(f's_mov_b32 {sT5}, 2')
        self.x_publish(sT5)
        self.stamp('p4')
        a(f's_mov_b32 {sL}, 1')
        a.pad()
        a('s_branch .LOOP')
        a.label(fin)
        a(f'''
        s_lshl_b32 {sT0}, {sG}, 7
        s_lshl_b32 {sT1}, {sRH}, 6
        s_add_u32 {sT0}, {sT0}, {sT1}
        s_lshl_b32 {sT1}, {sTT}, 5
        s_add_u32 {sT0}, {sT0}, {sT1}
        s_lshl_b32 {sT0}, {sT0}, 10
        s_lshl_b32 {sT1}, {sCT}, 7
        s_add_u32 {sT0}, {sT0}, {sT1}
        s_lshl_b32 {sT1}, {sFT}, 6
        s_add_u32 {sT0}, {sT0}, {sT1}
        v_lshlrev_b32 {vA0}, 10, {vT}
        v_lshl_add_u32 {vA0}, {vH}, 3, {vA0}
        v_add_u32 {vA0}, {sT0}, {vA0}
        ''')
        for i in range(4):
            a(f'global_store_dwordx2 {vA0}, {vr(RES+2*i,2)}, {sOUT} offset:{16*i}')
        self.stamp('end')

    def finish(self):
        a = self.a
        sk = a.newlabel('noep')
        a(f'''
        s_or_b32 {sT0}, s2, {sW}
        s_cmp_lg_u32 {sT0}, 0
        s_cbranch_scc1 {sk}
        v_mov_b32 {vA0}, 0
        v_mov_b32 {vA1}, {sEP}
        global_store_dword {vA0}, {vA1}, {sWS} sc1
        ''')
        a.label(sk)
        if self.prof:
            a(f'''
            s_lshl_b32 {sT0}, s2, 2
            s_add_u32 {sT0}, {sT0}, {sW}
            s_lshl_b32 {sT0}, {sT0}, 8
            s_add_u32 {sT0}, {sT0}, {PROF}
            v_lshl_add_u32 {vA0}, {vLANE}, 2, {sT0}
            global_store_dword {vA0}, v0, {sWS}
            ''')


import struct


def f2h(x):
    return hex(struct.unpack('<I', struct.pack('<f', x))[0])


GK0 = -2.0 * math.sqrt(2.0 / math.pi) * math.log2(math.e)
GK1 = GK0 * 0.044715

if __name__ == '__main__':
    prof = 'prof' in sys.argv
    out = sys.argv[1] if len(sys.argv) > 1 else 'k.s'
    g = Gen(prof=prof)
    t = g.build()
    open(out, 'w').write(t)
    print('instrs', g.a.ninstr, 'nops', g.a.nops, 'bytes', len(t))
    open(out + '.names', 'w').write(' '.join(g.names))
```

```python
import sys, math, struct
from asm2 import *

NAME = 'interleave_layers__sliding_block__mixer_channel_mlp__prompt_kernel'

FL = 0x1000
F_WT = FL
F_X = FL + 0x8000
F_O = FL + 0x10000
F_H = FL + 0x18000
F_KV = FL + 0x28000
ST = 0x80000
PROF = 0x180000
WT = 0x200000
W1T = WT
W2T = WT + 0x1C0000
WOT = WT + 0x380000
G0 = 0x600000
GB = 0x200000
XF = 0x0
OF = 0x60000
KV = 0xA0000
HF = 0x120000

A0, A1, A2, A3 = 0, 32768, 65536, 98304
LB = 114688
RING = 98304
QX = A3
RB = A3 + 8192

sX, sWQKV, sWO, sW1, sB1, sW2, sB2, sOUT, sDBG, sWS = 's[4:5]', 's[6:7]', 's[8:9]', 's[12:13]', 's[14:15]', 's[16:17]', 's[18:19]', 's[20:21]', 's[22:23]', 's[24:25]'
sG, sM, sW, sRH, sCT, sEP, sMODE, sGB = 's26', 's27', 's28', 's29', 's30', 's31', 's33', 's34'
sTT, sFT, sLIM, sONE2, sHM = 's35', 's36', 's37', 's38', 's[40:41]'
sLO16 = 's[42:43]'
sT0, sT1, sT2, sT3, sT4, sT5 = 's44', 's45', 's46', 's47', 's48', 's49'
sRING = 's50'
sCNT = 's51'
sXCC = 's52'
sPT = 's[54:55]'
sPI = 's56'
sIA, sIB = 's57', 's58'
sW1K = 's59'
sW8K = 's60'
sHD = 's61'
sTQ = 's62'
sPQ = 's63'
MASK0 = 64

vLANE, vL16, vT, vH = 'v1', 'v2', 'v3', 'v4'
vTR0, vTR1 = 'v5', 'v6'
vHZ = 'v7'
RES = 8
XE = 16
vR, vS, vK0, vK1 = 'v22', 'v23', 'v24', 'v25'
vA0, vA1, vA2, vA3, vA4, vA5 = 'v26', 'v27', 'v28', 'v29', 'v30', 'v31'
X = 32
ACC = 160
AEXT = 224
vBG0, vBG1, vBG2 = 'v253', 'v254', 'v255'

BIGNEG = 0xF149F2CA


def vr(b, n):
    return f'v[{b}:{b+n-1}]' if n > 1 else f'v{b}'


def ar(b, n):
    return f'a[{b}:{b+n-1}]' if n > 1 else f'a{b}'


def f2h(x):
    return hex(struct.unpack('<I', struct.pack('<f', x))[0])


def hx(x):
    return hex(x & 0xffffffff)


GK0 = -2.0 * math.sqrt(2.0 / math.pi) * math.log2(math.e)
GK1 = GK0 * 0.044715
MF32 = 'v_mfma_f32_32x32x16_bf16'
MF16 = 'v_mfma_f32_16x16x32_bf16'


class Gen:
    def __init__(self, prof=False, opt=None):
        self.a = Asm()
        self.prof = prof
        self.names = []
        self.bgq = []
        self.tail = []
        self.opt = opt or {}

    def stamp(self, name=''):
        if not self.prof:
            return
        a = self.a
        self.names.append(name)
        n = len(self.names) - 1
        a(f'''
        s_memtime {sPT}
        s_waitcnt lgkmcnt(0)
        v_writelane_b32 v0, s54, {n}
        ''')

    def bg(self, n=1):
        for _ in range(n):
            if self.bgq:
                self.bgq.pop(0)()

    def poll_loop(self, vaddr, shift=0):
        a = self.a
        lp = a.newlabel('poll')
        dn = a.newlabel('polld')
        a(f's_mov_b32 {sCNT}, 0')
        a.label(lp)
        a(f'global_load_dword {vA5}, {vaddr}, {sWS} sc1', count=False)
        a('s_waitcnt vmcnt(0)')
        self.cmpflag(shift)
        a(f'''
        s_add_u32 {sCNT}, {sCNT}, 1
        s_cmp_eq_u64 vcc, 0
        s_cbranch_scc1 {dn}
        s_cmp_lt_u32 {sCNT}, {sLIM}
        s_cbranch_scc1 {lp}
        s_mov_b32 {sLIM}, 1
        ''')
        a.label(dn)

    def cmpflag(self, shift):
        a = self.a
        if shift:
            a(f'v_xor_b32 {vA4}, {sEP}, {vA5}')
            a(f'v_cmp_le_u32 vcc, {1 << shift}, {vA4}')
        else:
            a(f'v_cmp_ne_u32 vcc, {sEP}, {vA5}')

    def poll_issue(self, vaddr):
        return self.a(f'global_load_dword {vA5}, {vaddr}, {sWS} sc1')

    def poll_check(self, seq, vaddr, shift=0):
        a = self.a
        ok = a.newlabel('pok')
        a.wait(seq)
        self.cmpflag(shift)
        a(f's_nop 0\ns_cmp_eq_u64 vcc, 0\ns_cbranch_scc1 {ok}')
        sv = (a.vm_done, a.lg_done)
        self.poll_loop(vaddr, shift)
        a.vm_done, a.lg_done = sv
        a.label(ok)

    def stores(self, lines):
        a = self.a
        sl = a.newlabel('slow')
        en = a.newlabel('sten')
        a(f's_cmp_eq_u32 {sMODE}, 1')
        a(f's_cbranch_scc0 {sl}')
        seq = None
        for ln in lines:
            seq = a(ln)
        a.label(en)
        self.tail.append(f'{sl}:\n    s_nop 15\n' + ''.join(f'    {ln} sc1\n' for ln in lines) + f'    s_nop 1\n    s_branch {en}')
        return seq

    def flag_store(self, vaddr, slow=False, val=None):
        a = self.a
        a(f'v_mov_b32 {vA4}, {val or sEP}')
        ln = f'global_store_dword {vaddr}, {vA4}, {sWS}'
        if slow:
            a(ln + ' sc1')
        else:
            self.stores([ln])

    def stats_load(self, inst, dst):
        a = self.a
        seq = None
        for j in range(8):
            seq = a(f'global_load_dwordx2 {vr(dst+2*j,2)}, {vA2}, {sWS} offset:{j*256} sc1')
        return seq

    def stats_ops(self, src, mlp, summed=False):
        o = []
        S, Q = f'v{src}', f'v{src+1}'
        if not summed:
            for j in range(1, 8):
                o.append(f'v_add_f32 {S}, {S}, v{src+2*j}')
                o.append(f'v_add_f32 {Q}, {Q}, v{src+2*j+1}')
        t0, t1, t2, t3 = [f'v{src+i}' for i in (2, 3, 4, 5)]
        o += [
            f'v_permlane32_swap_b32 {S}, {Q}',
            f'v_add_f32 {S}, {S}, {Q}',
            f'v_mov_b32 {Q}, {S}',
            f'v_permlane32_swap_b32 {S}, {Q}',
            f'v_mul_f32 {S}, 0xbb000000, {S}',
            f'v_mul_f32 {t0}, {S}, {S}',
            f'v_mul_f32 {Q}, 0x3b000000, {Q}',
            f'v_sub_f32 {Q}, {Q}, {t0}',
            f'v_max_f32 {Q}, 0, {Q}',
            f'v_add_f32 {t0}, 0x3727c5ac, {Q}',
            f'v_rsq_f32 {vR}, {t0}',
            f'v_cvt_pk_bf16_f32 {t1}, {S}, {S}',
            f'v_lshlrev_b32 {t1}, 16, {t1}',
            f'v_sub_f32 {t1}, {S}, {t1}',
            f'v_mul_f32 {t1}, {t1}, {vHZ}',
            f'v_cvt_pk_bf16_f32 v{XE+2}, {S}, {t1}',
        ]
        if mlp:
            o += [
                f'v_mul_f32 {t2}, {vR}, {vR}',
                f'v_mul_f32 {vS}, {t0}, {vR}',
                f'v_mov_b32 {t3}, 0x3727c5ac',
                f'v_fma_f32 {t2}, {Q}, {t2}, {t3}',
                f'v_rsq_f32 {t3}, {t2}',
                f'v_mul_f32 {vS}, {vS}, {t2}',
                f'v_mul_f32 {vR}, {vR}, {t3}',
                f'v_mul_f32 {vS}, {vS}, {t3}',
                f'v_cvt_pk_bf16_f32 {t1}, {vS}, {vS}',
                f'v_lshlrev_b32 {t1}, 16, {t1}',
                f'v_sub_f32 {t1}, {vS}, {t1}',
                f'v_mul_f32 {t1}, {t1}, {vHZ}',
                f'v_mul_f32 {t2}, {vS}, {vHZ}',
                f'v_cvt_pk_bf16_f32 v{XE+3}, {t2}, {t1}',
                f'v_mul_f32 {t0}, {vR}, {vR}',
                f'v_mul_f32 {vK0}, {f2h(GK0)}, {vR}',
                f'v_mul_f32 {t0}, {t0}, {vR}',
                f'v_mul_f32 {vK1}, {f2h(GK1)}, {t0}',
            ]
        else:
            o += [f'v_mov_b32 v{XE+3}, 0']
        return o

    def ext_w(self, c, dst, tmp):
        a = self.a
        t0, t1 = f'v{tmp}', f'v{tmp+1}'
        a(f'''
        v_cvt_pk_bf16_f32 {t0}, {c}, {c}
        v_lshlrev_b32 {t0}, 16, {t0}
        v_sub_f32 {t0}, {c}, {t0}
        v_cndmask_b32 {t0}, {c}, {t0}, {sHM}
        v_mul_f32 {t1}, {c}, {vHZ}
        v_cvt_pk_bf16_f32 {dst}, {t0}, {t1}
        ''')

    def trw(self, dst, s, part):
        a = self.a
        b, off = {0: (vTR1, 0), 1: (vTR0, A0), 2: (vTR0, A1)}[part]
        off += s * 1024
        a(f'ds_read_b64_tr_b16 {vr(dst,2)}, {b} offset:{off}')
        return a(f'ds_read_b64_tr_b16 {vr(dst+2,2)}, {b} offset:{off+512}')

    def wqkv_dma1(self, vsrc, vtmp, q, p):
        a = self.a
        base = {0: A2, 1: A0, 2: A1}[p]
        a(f's_add_u32 m0, {sW1K}, {hx(base + q*4096)}')
        a(f'v_add_u32 {vtmp}, {q*4*49152 + p*1024}, {vsrc}')
        return a(f'global_load_lds_dwordx4 {vtmp}, {sWQKV}')

    def pattern_ones(self, PO):
        a = self.a
        a(f'''
        v_bfe_u32 {vA2}, {vLANE}, 2, 1
        v_bfe_u32 {vA3}, {vLANE}, 4, 1
        v_cmp_eq_u32 vcc, {vA2}, {vA3}
        v_mov_b32 {vA2}, {sONE2}
        v_cndmask_b32 v{PO}, 0, {vA2}, vcc
        v_cndmask_b32 v{PO+1}, 0, {vA2}, vcc
        v_cndmask_b32 v{PO+2}, 0, {vA2}, vcc
        v_cndmask_b32 v{PO+3}, 0, {vA2}, vcc
        ''')

    def do(self, o):
        if isinstance(o, str):
            self.a(o)
        elif o[0] == 'wait':
            self.a.wait(*o[1:])
        elif o[0] == 'call':
            o[1]()

    def build(self):
        a = self.a
        a.raw('; @launch grid=(256,1,1) block=(256,1,1) lds=163840')
        a.raw('.amdgcn_target "amdgcn-amd-amdhsa--gfx950"\n.text')
        a.raw(kernel_head(NAME))
        self.prologue()
        for l in range(2):
            if l == 0:
                self.p1a_l0()
            else:
                self.p1a_l1()
            self.p1b(l)
            self.attention(l)
            self.p2(l)
            self.p3(l)
            self.p4(l)
        assert not self.bgq
        self.finish()
        a.label('.EXIT')
        a('s_endpgm')
        for t in self.tail:
            a.raw(t)
        a.raw('.section .rodata,"a"')
        a.raw(kernel_desc(NAME, 512, 256, 102))
        return a.text()

    def prologue(self):
        a = self.a
        a(f'''
        s_cmp_ge_u32 s2, 256
        s_cbranch_scc1 .EXIT
        s_load_dwordx4 s[4:7], s[0:1], 0
        s_load_dwordx2 s[24:25], s[0:1], 80
        s_load_dwordx2 s[8:9], s[0:1], 16
        s_load_dwordx8 s[12:19], s[0:1], 32
        s_load_dwordx4 s[20:23], s[0:1], 64
        v_lshrrev_b32 v5, 6, v0
        v_and_b32 {vLANE}, 63, v0
        s_and_b32 {sT0}, s2, 7
        v_readfirstlane_b32 {sW}, v5
        s_lshr_b32 {sT1}, s2, 3
        s_lshr_b32 {sT2}, {sT1}, 4
        s_lshl_b32 {sT0}, {sT0}, 1
        s_add_u32 {sG}, {sT0}, {sT2}
        s_and_b32 {sM}, {sT1}, 15
        s_lshr_b32 {sRH}, {sM}, 3
        s_and_b32 {sCT}, {sM}, 7
        s_lshr_b32 {sTT}, {sW}, 1
        s_and_b32 {sFT}, {sW}, 1
        s_lshl_b32 {sW1K}, {sW}, 10
        s_lshl_b32 {sW8K}, {sW}, 13
        v_lshlrev_b32 {vL16}, 4, {vLANE}
        v_and_b32 {vT}, 31, {vLANE}
        v_lshrrev_b32 {vH}, 5, {vLANE}
        v_mov_b32 v0, 0
        ''')

    def prologue2(self):
        a = self.a
        a(f'''
        s_mov_b32 {sMODE}, 0
        s_mov_b32 {sLIM}, 40000
        s_mov_b32 {sONE2}, 0x3f803f80
        s_mov_b32 s40, 0
        s_mov_b32 s41, -1
        s_mov_b32 s42, 0xffff
        s_mov_b32 s43, 0xffff
        s_lshl_b32 {sGB}, {sG}, 21
        s_add_u32 {sGB}, {sGB}, {G0}
        s_getreg_b32 {sXCC}, hwreg(HW_REG_XCC_ID)
        s_and_b32 {sXCC}, {sXCC}, 7
        s_lshl_b32 {sTQ}, {sG}, 2
        s_lshl_b32 {sT1}, {sRH}, 1
        s_add_u32 {sTQ}, {sTQ}, {sT1}
        s_add_u32 {sTQ}, {sTQ}, {sTT}
        s_lshl_b32 {sPQ}, {sCT}, 1
        s_add_u32 {sPQ}, {sPQ}, {sFT}
        v_cndmask_b32 {vHZ}, 1.0, 0, {sHM}
        v_bfe_u32 {vA0}, {vLANE}, 2, 2
        v_lshl_add_u32 {vA0}, {vH}, 2, {vA0}
        v_lshlrev_b32 {vA0}, 6, {vA0}
        v_bfe_u32 {vA1}, {vLANE}, 4, 1
        v_lshl_add_u32 {vA0}, {vA1}, 5, {vA0}
        v_and_b32 {vA1}, 3, {vLANE}
        v_lshl_add_u32 {vTR0}, {vA1}, 3, {vA0}
        v_add_u32 {vTR1}, {A2}, {vTR0}
        v_mov_b32 v{XE}, 0
        v_mov_b32 v{XE+1}, 0
        v_mov_b32 v{XE+4}, 0
        v_mov_b32 v{XE+5}, 0
        v_lshlrev_b32 {vA0}, 2, {vH}
        v_sub_u32 {vA0}, {vT}, {vA0}
        s_lshl_b32 {sT0}, {sG}, 2
        s_sub_i32 {sT0}, 7, {sT0}
        s_sub_i32 {sIA}, {sT0}, {sTT}
        s_add_i32 {sIB}, {sT0}, {sTT}
        s_sub_i32 {sIB}, {sIB}, 3
        ''')
        for j in range(16):
            c = 8 * (j >> 2) + (j & 3)
            a(f'v_cmp_le_i32 s[{MASK0+2*j}:{MASK0+2*j+1}], {c}, {vA0}')

    def res_addr(self, v):
        a = self.a
        a(f'''
        s_lshl_b32 {sT0}, {sTQ}, 15
        s_lshl_b32 {sT1}, {sPQ}, 6
        s_add_u32 {sT0}, {sT0}, {sT1}
        v_lshlrev_b32 {v}, 10, {vT}
        v_lshl_add_u32 {v}, {vH}, 3, {v}
        v_add_u32 {v}, {sT0}, {v}
        ''')

    def p1a_l0(self):
        a = self.a
        accK, accV, accG = ACC, ACC + 16, ACC + 32
        WB = ACC + 48
        PO = 224
        CS = 228
        XA = 240
        XR = 244
        WS_ = 'v248'
        vEPO = 'v249'
        vTM = 'v250'
        a(f'''
        v_lshrrev_b32 {vA0}, 2, {vLANE}
        v_and_b32 {vA1}, 3, {vLANE}
        v_and_b32 {vA2}, 3, {vA0}
        v_bfe_u32 {vA3}, {vA0}, 2, 1
        v_lshl_add_u32 {vA2}, {vA3}, 3, {vA2}
        v_bfe_u32 {vA3}, {vA0}, 3, 1
        v_lshl_add_u32 {vA2}, {vA3}, 2, {vA2}
        s_movk_i32 {sT0}, 3072
        v_mul_u32_u24 {vA2}, {sT0}, {vA2}
        v_lshl_add_u32 {vA2}, {vA1}, 4, {vA2}
        s_mul_i32 {sT0}, {sW}, 49152
        s_lshl_b32 {sT1}, {sM}, 6
        s_add_u32 {sT0}, {sT0}, {sT1}
        v_add_u32 {WS_}, {sT0}, {vA2}
        s_lshl_b32 {sT0}, {sG}, 7
        s_lshl_b32 {sT1}, {sW}, 5
        s_add_u32 {sT0}, {sT0}, {sT1}
        s_lshl_b32 {sT0}, {sT0}, 10
        s_lshl_b32 {sRING}, {sW}, 14
        s_add_u32 {sRING}, {sRING}, {RING}
        v_lshrrev_b32 {vA0}, 3, {vLANE}
        v_and_b32 {vA1}, 7, {vLANE}
        v_lshrrev_b32 {vA2}, 1, {vA0}
        v_xor_b32 {vA1}, {vA1}, {vA2}
        v_lshlrev_b32 {vA0}, 10, {vA0}
        v_add_u32 {vA0}, {sT0}, {vA0}
        v_lshl_add_u32 v{XA}, {vA1}, 4, {vA0}
        v_xor_b32 {vA1}, 4, {vA1}
        v_lshl_add_u32 v{XA+1}, {vA1}, 4, {vA0}
        v_add_u32 v{XA+1}, 8192, v{XA+1}
        v_add_u32 v{XA+2}, 16384, v{XA}
        v_add_u32 v{XA+3}, 16384, v{XA+1}
        s_waitcnt lgkmcnt(0)
        ''')
        self.stamp('start')

        def xdma(q):
            seq = None
            for j in range(4):
                a(f's_add_u32 m0, {sRING}, {hx((q % 4)*4096 + j*1024 - q*128)}')
                seq = a(f'global_load_lds_dwordx4 v{XA+j}, {sX} offset:{q*128}')
            return seq
        wseq = {}
        xseq = {}
        for q in range(4):
            self.wqkv_dma1(WS_, vTM, q, 1)
            wseq[q] = self.wqkv_dma1(WS_, vTM, q, 2)
            xseq[q] = xdma(q)
            if q == 0:
                a(f'v_mov_b32 {vA0}, 0')
                ep = a(f'global_load_dword {vEPO}, {vA0}, {sWS} sc1')
            if q == 1:
                self.prologue2()
        a(f'''
        v_lshrrev_b32 {vA0}, 2, {vLANE}
        v_and_b32 {vA1}, 3, {vLANE}
        s_cmp_eq_u32 {sW}, 3
        s_cselect_b32 {sT2}, 1, 3
        v_and_b32 {vA2}, {sT2}, {vA1}
        s_movk_i32 {sT3}, 3584
        v_mul_u32_u24 {vA3}, {sT3}, {vA0}
        v_lshl_add_u32 {vA3}, {vA2}, 4, {vA3}
        s_mul_i32 {sT0}, {sG}, {32*3584}
        s_mul_i32 {sT1}, {sM}, 224
        s_add_u32 {sT0}, {sT0}, {sT1}
        s_lshl_b32 {sT1}, {sW}, 6
        s_add_u32 {sT0}, {sT0}, {sT1}
        v_add_u32 {vA3}, {sT0}, {vA3}
        s_add_u32 m0, {sW1K}, {A2}
        v_lshlrev_b32 {vA4}, 10, {vA0}
        global_load_lds_dwordx4 {vA3}, {sW1}
        v_add_u32 {vA3}, {16*3584}, {vA3}
        s_add_u32 m0, {sW1K}, {A2+4096}
        v_lshl_add_u32 {vA4}, {vA1}, 4, {vA4}
        global_load_lds_dwordx4 {vA3}, {sW1}
        s_lshl_b32 {sT0}, {sCT}, 7
        s_lshl_b32 {sT1}, {sRH}, 6
        s_add_u32 {sT0}, {sT0}, {sT1}
        v_add_u32 {vA4}, {sT0}, {vA4}
        s_lshl_b32 {sT2}, {sW}, 1
        s_min_u32 {sT2}, {sT2}, 5
        s_mul_i32 {sT3}, {sG}, 7
        s_add_u32 {sT4}, {sT2}, {sT3}
        s_lshl_b32 {sT3}, {sT4}, 14
        v_add_u32 {vA3}, {sT3}, {vA4}
        s_add_u32 m0, {sW1K}, {A2+8192}
        s_nop 0
        global_load_lds_dwordx4 {vA3}, {sW2}
        v_add_u32 {vA3}, 16384, {vA3}
        s_add_u32 m0, {sW1K}, {A2+12288}
        s_lshl_b32 {sT5}, {sG}, 1
        global_load_lds_dwordx4 {vA3}, {sW2}
        s_add_u32 {sT5}, {sT5}, {sFT}
        s_lshl_b32 {sT3}, {sT5}, 14
        v_add_u32 {vA3}, {sT3}, {vA4}
        s_add_u32 m0, {sW1K}, {A2+16384}
        s_nop 0
        ''')
        tj = a(f'global_load_lds_dwordx4 {vA3}, {sWO}')
        a(f'''
        v_and_b32 {vA1}, 15, {vLANE}
        v_lshl_add_u32 {vA1}, {vH}, 4, {vA1}
        v_lshlrev_b32 {vA1}, 4, {vA1}
        s_cmp_eq_u32 {sW}, 3
        s_cselect_b64 vcc, -1, 0
        s_cselect_b32 {sT2}, 10, 11
        v_cndmask_b32 {vA1}, {vL16}, {vA1}, vcc
        s_mul_i32 {sT0}, {sM}, 0x1C000
        s_lshl_b32 {sT1}, {sG}, {sT2}
        s_add_u32 {sT0}, {sT0}, {sT1}
        s_lshl_b32 {sT1}, {sW}, 15
        s_add_u32 {sT0}, {sT0}, {sT1}
        s_add_u32 {sT0}, {sT0}, {W1T}
        v_add_u32 {vBG0}, {sT0}, {vA1}
        s_sub_u32 {sT2}, {sT2}, 1
        s_lshl_b32 {sT2}, 1, {sT2}
        v_add_u32 v251, {sT2}, {vBG0}
        s_mul_i32 {sT0}, {sCT}, 0x38000
        s_lshl_b32 {sT1}, {sT4}, 11
        s_add_u32 {sT0}, {sT0}, {sT1}
        s_lshl_b32 {sT2}, {sRH}, 10
        s_add_u32 {sT0}, {sT0}, {sT2}
        s_add_u32 {sT0}, {sT0}, {W2T}
        v_add_u32 {vBG1}, {sT0}, {vL16}
        s_lshl_b32 {sT0}, {sCT}, 16
        s_lshl_b32 {sT1}, {sT5}, 11
        s_add_u32 {sT0}, {sT0}, {sT1}
        s_add_u32 {sT0}, {sT0}, {sT2}
        s_add_u32 {sT0}, {sT0}, {WOT}
        v_add_u32 {vBG2}, {sT0}, {vL16}
        ''')
        a(f'''
        v_bfe_u32 {vA0}, {vT}, 1, 3
        v_lshlrev_b32 {vA1}, 7, {vT}
        v_add_u32 {vA1}, {sRING}, {vA1}
        ''')
        for sp in range(4):
            a(f'''
            v_add_u32 {vA2}, {2*sp}, {vH}
            v_xor_b32 {vA2}, {vA2}, {vA0}
            v_lshl_add_u32 v{XR+sp}, {vA2}, 4, {vA1}
            ''')
        self.pattern_ones(PO)
        self.stamp('issued')
        TB = X + 4*27
        TQ = self.opt.get('tq', 3)
        for q in range(8):
            a.wait(wseq[q], xseq[q])
            if q == TQ + 3:
                a.wait(tst)
            a('s_barrier')
            if q == TQ + 3:
                a(f'''
                s_lshl_b32 {sT0}, {sM}, 4
                s_add_u32 {sT0}, {sT0}, {sG}
                s_lshl_b32 {sT0}, {sT0}, 7
                s_add_u32 {sT0}, {sT0}, {F_WT}
                v_mov_b32 {vA3}, {sT0}
                s_and_b32 {sT0}, {sEP}, -8
                s_or_b32 {sT0}, {sT0}, {sXCC}
                ''')
                self.flag_store(vA3, slow=True, val=sT0)
            xr = []
            for sp in range(4):
                xr.append(a(f'ds_read_b128 {vr(X+4*(4*q+sp),4)}, v{XR+sp} offset:{(q%4)*4096}'))
            wl = {}
            wl[0] = (self.trw(WB, 4*q, 1), self.trw(WB+4, 4*q, 2))
            if q == TQ:
                a.wait(tj)
                a(f'v_add_u32 {vA0}, {sW1K}, {vTR1}')
                for i in range(5):
                    a(f'ds_read_b64_tr_b16 {vr(TB+4*i,2)}, {vA0} offset:{i*4096}')
                    tl = a(f'ds_read_b64_tr_b16 {vr(TB+4*i+2,2)}, {vA0} offset:{i*4096+512}')
            for sp in range(4):
                s = 4*q + sp
                if sp < 3:
                    b = WB + 8*((sp+1) % 2)
                    wl[sp+1] = (self.trw(b, s+1, 1), self.trw(b+4, s+1, 2))
                b = WB + 8*(sp % 2)
                a.wait(xr[3] if sp == 0 else None, wl[sp][1])
                z = lambda r, n: '0' if s == 0 else vr(r, n)
                a(f'{MF32} {vr(accK,16)}, {vr(b,4)}, {vr(X+4*s,4)}, {z(accK,16)}')
                if sp == 0 and q < 4:
                    self.wqkv_dma1(WS_, vTM, q+4, 1)
                    wseq[q+4] = self.wqkv_dma1(WS_, vTM, q+4, 2)
                a(f'{MF16} {vr(CS,4)}, {vr(PO,4)}, {vr(b,4)}, {z(CS,4)}')
                a(f'{MF32} {vr(accV,16)}, {vr(X+4*s,4)}, {vr(b+4,4)}, {z(accV,16)}')
                if sp == 0 and q < 4:
                    xseq[q+4] = xdma(q+4)
                a(f'{MF16} {vr(CS+4,4)}, {vr(PO,4)}, {vr(b+4,4)}, {z(CS+4,4)}')
                a(f'{MF32} {vr(accG,16)}, {vr(X+4*s,4)}, {vr(X+4*s,4)}, {z(accG,16)}')
                if q == TQ and sp == 1:
                    a.wait(tl)
                    a(f'''
                    global_store_dwordx4 {vBG0}, {vr(TB,4)}, {sWS} sc1
                    global_store_dwordx4 v251, {vr(TB+4,4)}, {sWS} sc1
                    global_store_dwordx4 {vBG1}, {vr(TB+8,4)}, {sWS} sc1
                    global_store_dwordx4 {vBG1}, {vr(TB+12,4)}, {sWS} offset:2048 sc1
                    ''')
                    tst = a(f'global_store_dwordx4 {vBG2}, {vr(TB+16,4)}, {sWS} sc1')
                    a(f'v_readfirstlane_b32 {sEP}, {vEPO}')
                    a(f's_add_u32 {sEP}, {sEP}, 0x9E3779B9')
                    for qq in range(8):
                        self.bgq.append(lambda qq=qq: setattr(self, 'wq_last', self.wqkv_dma1(WS_, vTM, qq, 0)))
                    self.bgq.append(self.res_load)
                elif q >= TQ:
                    self.bg(1)
                a(f'{MF16} {vr(CS+8,4)}, {vr(PO,4)}, {vr(X+4*s,4)}, {z(CS+8,4)}')
        self.bg(100)
        self.stamp('kv')
        self.ext_w(f'v{CS}', vA0, WB)
        a(f'v_accvgpr_write_b32 a{AEXT+8}, {vA0}')
        self.ext_w(f'v{CS+4}', vA0, WB)
        a(f'v_accvgpr_write_b32 a{AEXT+10}, {vA0}')
        a(f'v_accvgpr_write_b32 a{AEXT+9}, 0\nv_accvgpr_write_b32 a{AEXT+11}, 0')
        S, Q = WB, WB + 1
        a(f'v_mul_f32 v{S}, v{CS+8}, {vHZ}')
        a(f'v_bfe_u32 {vA0}, {vT}, 2, 1\nv_cmp_eq_u32 vcc, {vA0}, {vH}')
        a(f'v_mov_b32 v{Q}, v{accG}')
        for j in range(1, 16):
            a(f'v_cndmask_b32 v{Q}, v{Q}, v{accG+j}, s[{MASK0+2*j}:{MASK0+2*j+1}]')
        a(f'v_cndmask_b32 v{Q}, 0, v{Q}, vcc')
        for o in self.stats_ops(WB, False, summed=True):
            a(o)
        a.wait(self.wq_last)
        a('s_barrier')

    def res_load(self):
        a = self.a
        self.res_addr(vA0)
        for i in range(4):
            self.rs = a(f'global_load_dwordx2 {vr(RES+2*i,2)}, {vA0}, {sX} offset:{16*i}')

    def xaddr(self, inst):
        a = self.a
        a(f'''
        s_lshl_b32 {sT0}, {sG}, 2
        s_add_u32 {sT0}, {sT0}, {sW}
        s_lshl_b32 {sT1}, {sT0}, 7
        s_add_u32 {sT1}, {sT1}, {F_X + inst*0x2000}
        v_and_b32 {vA3}, 15, {vLANE}
        v_lshl_add_u32 {vA3}, {vA3}, 2, {sT1}
        s_lshl_b32 {sT0}, {sT0}, 12
        s_add_u32 {sT0}, {sT0}, {ST + inst*0x40000}
        v_lshlrev_b32 {vA2}, 3, {vT}
        v_lshl_add_u32 {vA2}, {vH}, 11, {vA2}
        v_add_u32 {vA2}, {sT0}, {vA2}
        s_lshl_b32 {sT1}, {sW}, 15
        s_add_u32 {sT2}, {sGB}, {sT1}
        s_add_u32 {sT2}, {sT2}, {XF + (inst-1)*0x20000 + 4096}
        v_add_u32 {vA1}, {sT2}, {vL16}
        ''')

    def xload(self, inst, statdst):
        a = self.a
        self.poll_loop(vA3)
        self.stamp('xflag')
        seqs = []
        sl = None
        for s in range(32):
            if s % 8 == 0 and s > 0:
                a(f'v_add_u32 {vA1}, 8192, {vA1}')
            seqs.append(a(f'global_load_dwordx4 {vr(X+4*s,4)}, {vA1}, {sWS} offset:{(s%8)*1024-4096} sc1'))
            if s == 7:
                sl = self.stats_load(inst, statdst)
        return sl, seqs

    def p1a_l1(self):
        a = self.a
        WB = ACC + 48
        SD = 232
        accK, accV = ACC, ACC + 16
        wl = {}
        for s in range(2):
            b = WB + 8*(s % 3)
            wl[s] = (self.trw(b, s, 1), self.trw(b+4, s, 2))
        sl, xs = self.xload(2, SD)
        so = self.stats_ops(SD, False)
        for s in range(32):
            b = WB + 8*(s % 3)
            a.wait(xs[s], wl[s][1])
            ck = '0' if s == 0 else vr(accK, 16)
            cv = '0' if s == 0 else vr(accV, 16)
            a(f'{MF32} {vr(accK,16)}, {vr(b,4)}, {vr(X+4*s,4)}, {ck}')
            if s + 2 < 32:
                b2 = WB + 8*((s+2) % 3)
                w0 = self.trw(b2, s+2, 1)
            if s >= 8:
                for o in so[:2]:
                    a(o)
                so = so[2:]
            a(f'{MF32} {vr(accV,16)}, {vr(X+4*s,4)}, {vr(b+4,4)}, {cv}')
            if s + 2 < 32:
                wl[s+2] = (w0, self.trw(b2+4, s+2, 2))
        assert not so
        self.stamp('kv')
        a('s_barrier')

    def w1_bg(self, tiles):
        a = self.a

        def setup():
            a(f'''
            s_mul_i32 {sT0}, {sM}, 0x1C000
            s_add_u32 {sT0}, {sT0}, {W1T}
            v_add_u32 {vBG0}, {sT0}, {vL16}
            ''')

        self.bgq.append(setup)
        for c in tiles:
            for i0 in range(0, 8 if c < 3 else 4, 4):
                for i in range(i0, i0 + 4):
                    def op(c=c, i=i, i0=i0):
                        if c < 3:
                            a(f's_add_u32 m0, {sW8K}, {c*32768 + i0*1024}')
                        else:
                            a(f's_lshl_b32 {sT0}, {sW}, 12\ns_add_u32 m0, {sT0}, {A3}')
                        if i == i0:
                            a(f'v_add_u32 {vBG1}, m0, {vBG0}')
                        self.w1seq = a(f'global_load_lds_dwordx4 {vBG1}, {sWS} offset:{(i%4)*1024}')
                    self.bgq.append(op)

    def wreg_bg(self, base, ctstride, wstride, n, dst, lo=0):
        a = self.a

        def setup():
            a(f'''
            s_mul_i32 {sT0}, {sCT}, {ctstride}
            s_mul_i32 {sT1}, {sW}, {wstride}
            s_add_u32 {sT0}, {sT0}, {sT1}
            s_add_u32 {sT0}, {sT0}, {base + 4096 + lo*2048}
            s_lshl_b32 {sT1}, {sFT}, 10
            s_add_u32 {sT2}, {sT0}, {sT1}
            s_xor_b32 {sT1}, {sT1}, 1024
            s_add_u32 {sT3}, {sT0}, {sT1}
            v_add_u32 {vBG1}, {sT2}, {vL16}
            v_add_u32 {vBG2}, {sT3}, {vL16}
            ''')
        self.bgq.append(setup)
        for i in range(lo, n):
            for j in range(2):
                def op(i=i, j=j):
                    v = (vBG1, vBG2)[j]
                    if (i - lo) % 4 == 0 and i > lo:
                        a(f'v_add_u32 {v}, 8192, {v}')
                    self.wrseq = a(f'global_load_dwordx4 {dst(i, j)}, {v}, {sWS} offset:{((i-lo)%4)*2048-4096}')
                self.bgq.append(op)

    def p1b(self, l):
        a = self.a
        accK, accV, accQ = ACC, ACC + 16, ACC + 32
        WB = ACC + 48
        PO = 220
        CS = 224
        RR = 228
        a(f'{MF32} {vr(accK,16)}, {ar(AEXT+8,4)}, {vr(XE+2,4)}, {vr(accK,16)}')
        a(f'{MF32} {vr(accV,16)}, {vr(XE,4)}, {ar(AEXT+8,4)}, {vr(accV,16)}')
        a(f'''
        s_lshl_b32 {sT0}, {sW}, 7
        s_add_u32 {sT0}, {sT0}, {RB}
        v_lshl_add_u32 {vA0}, {vT}, 2, {sT0}
        v_lshl_add_u32 {vA1}, {vH}, 4, {sT0}
        ds_write_b32 {vA0}, {vR}
        ''')
        for i in range(4):
            rr = a(f'ds_read_b128 {vr(RR+4*i,4)}, {vA1} offset:{32*i}')
        wl = {}
        for s in range(2):
            wl[s] = self.trw(WB + 4*(s % 3), s, 0)
        if l == 0:
            self.pattern_ones(PO)
        a(f'''
        s_lshl_b32 {sT1}, {sM}, 14
        s_add_u32 {sT0}, {sGB}, {sT1}
        s_lshl_b32 {sT1}, {sW}, 12
        s_add_u32 {sT0}, {sT0}, {sT1}
        s_add_u32 {sT0}, {sT0}, {KV + l*0x40000}
        v_add_u32 {vA1}, {sT0}, {vL16}
        s_add_u32 {sT1}, {sT1}, {LB + 8*4096}
        v_add_u32 {vA2}, {sT1}, {vL16}
        ''')

        def pub(i):
            self.kvst = a(f'global_store_dwordx4 {vA1}, {vr(accK+4*i,4)}, {sWS} offset:{i*1024} sc1')

        def publ(i):
            a(f'ds_write_b128 {vA2}, {vr(accK+4*i,4)} offset:{i*1024}')
        ep = []
        for hh in range(2):
            for j in range(8*hh, 8*hh+8):
                ep.append(f'v_mul_f32 v{accK+j}, v{accK+j}, {vR}')
            for j in range(4*hh, 4*hh+4):
                ep.append(f'v_cvt_pk_bf16_f32 v{accK+j}, v{accK+2*j}, v{accK+2*j+1}')
            ep.append(('call', lambda i=hh: pub(i)))
        ep.append(('wait', rr))
        for hh in range(2):
            for j in range(8*hh, 8*hh+8):
                ep.append(f'v_mul_f32 v{accV+j}, v{accV+j}, v{RR+j}')
            for j in range(4*hh, 4*hh+4):
                ep.append(f'v_cvt_pk_bf16_f32 v{accK+8+j}, v{accV+2*j}, v{accV+2*j+1}')
            ep.append(('call', lambda i=hh: pub(2+i)))

        def wtpoll():
            a(f'''
            s_lshl_b32 {sT0}, {sCT}, 11
            s_lshl_b32 {sT1}, {sG}, 7
            v_and_b32 {vA3}, 15, {vLANE}
            v_lshlrev_b32 {vA0}, 7, {vA3}
            v_bfe_u32 {vA4}, {vLANE}, 4, 1
            v_lshl_add_u32 {vA0}, {vA4}, 14, {vA0}
            v_add_u32 {vA0}, {sT0}, {vA0}
            v_lshl_add_u32 {vA3}, {vA3}, 11, {sT1}
            v_cndmask_b32 {vA0}, {vA0}, {vA3}, {sHM}
            v_add_u32 {vA0}, {F_WT}, {vA0}
            ''')
            self.wtp = self.poll_issue(vA0)
        if l == 0:
            ep.append(('call', wtpoll))
        for i in range(4):
            ep.append(('call', lambda i=i: publ(i)))

        def kvflag():
            a(f'''
            s_lshl_b32 {sT0}, {sG}, 4
            s_add_u32 {sT0}, {sT0}, {sM}
            s_lshl_b32 {sT0}, {sT0}, 2
            s_add_u32 {sT0}, {sT0}, {sW}
            s_lshl_b32 {sT0}, {sT0}, 7
            s_add_u32 {sT0}, {sT0}, {F_KV + l*0x20000}
            v_mov_b32 {vA3}, {sT0}
            ''')
            a.wait(self.kvst)
            self.flag_store(vA3, slow=True)
        per = 6 if l == 0 else 5
        KF = 27 if l == 0 else 31
        if l == 1:
            self.w1_bg((0, 1))
        for s in range(32):
            b = WB + 4*(s % 3)
            a.wait(wl[s])
            a(f'{MF32} {vr(accQ,16)}, {vr(b,4)}, {vr(X+4*s,4)}, {"0" if s == 0 else vr(accQ,16)}')
            if s + 2 < 32:
                wl[s+2] = self.trw(WB + 4*((s+2) % 3), s+2, 0)
            if l == 0:
                a(f'{MF16} {vr(CS,4)}, {vr(PO,4)}, {vr(b,4)}, {"0" if s == 0 else vr(CS,4)}')
            if s >= 1:
                if not ep:
                    self.bg(1)
                for o in ep[:per]:
                    self.do(o)
                ep = ep[per:]
            if s == KF:
                kvflag()
        assert not ep
        if l == 0:
            self.ext_w(f'v{CS}', f'v{WB}', RR)
            a(f'v_accvgpr_write_b32 a{AEXT+12}, v{WB}')
            a(f'v_accvgpr_write_b32 a{AEXT+13}, 0\nv_accvgpr_write_b32 a{AEXT+14}, 0\nv_accvgpr_write_b32 a{AEXT+15}, 0')
        a(f'{MF32} {vr(accQ,16)}, {ar(AEXT+12,4)}, {vr(XE+2,4)}, {vr(accQ,16)}')
        a(f'v_mul_f32 {vA1}, {f2h(0.25*math.log2(math.e))}, {vR}')
        if l == 0:
            self.poll_check(self.wtp, vA0, shift=3)
            a(f'''
            v_and_b32 {vA5}, 7, {vA5}
            v_cmp_ne_u32 vcc, {sXCC}, {vA5}
            s_nop 0
            s_cmp_eq_u32 vcc_hi, 0
            s_cselect_b32 {sMODE}, 1, 0
            ''')
            self.w1_bg((0, 1))
        a(f's_lshl_b32 {sT0}, {sW}, 11\ns_add_u32 {sT0}, {sT0}, {QX}\nv_add_u32 {vA2}, {sT0}, {vL16}')
        for hh in range(2):
            for j in range(8*hh, 8*hh+8):
                a(f'v_mul_f32 v{accQ+j}, v{accQ+j}, {vA1}')
            for j in range(4*hh, 4*hh+4):
                a(f'v_cvt_pk_bf16_f32 v{accV+j}, v{accQ+2*j}, v{accQ+2*j+1}')
            a(f'ds_write_b128 {vA2}, {vr(accV+4*hh,4)} offset:{hh*1024}')
        self.stamp('q')

    def halo_addr(self, l):
        a = self.a
        a(f'''
        s_add_u32 {sT2}, {sG}, {sTT}
        s_max_u32 {sT2}, {sT2}, 2
        s_sub_u32 {sT2}, {sT2}, 2
        s_lshl_b32 {sT0}, {sT2}, 4
        s_add_u32 {sT0}, {sT0}, {sM}
        s_lshl_b32 {sT0}, {sT0}, 2
        s_lshl_b32 {sT1}, {sFT}, 1
        s_add_u32 {sT0}, {sT0}, {sT1}
        s_lshl_b32 {sT0}, {sT0}, 7
        s_add_u32 {sT0}, {sT0}, {F_KV + l*0x20000}
        v_and_b32 {vA3}, 1, {vLANE}
        v_lshl_add_u32 {vA3}, {vA3}, 7, {sT0}
        s_lshl_b32 {sT0}, {sT2}, 21
        s_lshl_b32 {sT1}, {sM}, 14
        s_add_u32 {sT0}, {sT0}, {sT1}
        s_lshl_b32 {sT1}, {sFT}, 13
        s_add_u32 {sT0}, {sT0}, {sT1}
        s_add_u32 {sT0}, {sT0}, {G0 + KV + l*0x40000}
        v_add_u32 {vA1}, {sT0}, {vL16}
        v_add_u32 {vA2}, 4096, {vA1}
        ''')

    def halo_dma(self):
        a = self.a
        a(f's_add_u32 m0, {sW8K}, {LB}\ns_nop 0')
        for i in range(4):
            a(f'global_load_lds_dwordx4 {vA1}, {sWS} offset:{i*1024} sc1')
        a(f's_add_u32 m0, {sW8K}, {LB+4096}\ns_nop 0')
        for i in range(4):
            seq = a(f'global_load_lds_dwordx4 {vA2}, {sWS} offset:{i*1024} sc1')
        return seq

    def attention(self, l):
        a = self.a
        Q = {'a': 96, 'b': 100}
        NM = {'a': 104, 'b': 120}
        S = [136, 152]
        O = {'a': 168, 'b': 184}
        KB = [200, 204, 208]
        VB = 212
        MX = {'a': 'v220', 'b': 'v221'}
        DL = {'a': 'v222', 'b': 'v223'}
        vBIG = 'v224'
        vK = {'a': 'v225', 'b': 'v226'}
        vV = {'a': 'v227', 'b': 'v228'}
        m = lambda j: f's[{MASK0+2*j}:{MASK0+2*j+1}]'
        self.halo_addr(l)
        hp = self.poll_issue(vA3)
        a(f'''
        s_lshl_b32 {sT0}, {sTT}, 12
        s_lshl_b32 {sT1}, {sFT}, 10
        s_add_u32 {sT2}, {sT0}, {sT1}
        s_add_u32 {sT2}, {sT2}, {LB}
        v_add_u32 {vK['a']}, {sT2}, {vL16}
        s_sub_u32 {sT3}, {sT1}, {sT0}
        s_add_u32 {sT3}, {sT3}, {LB + 3*4096}
        v_add_u32 {vK['b']}, {sT3}, {vL16}
        s_lshl_b32 {sT1}, {sFT}, 8
        s_add_u32 {sT2}, {sT0}, {sT1}
        s_add_u32 {sT2}, {sT2}, {LB + 2048}
        v_add_u32 {vV['a']}, {sT2}, {vL16}
        s_sub_u32 {sT3}, {sT1}, {sT0}
        s_add_u32 {sT3}, {sT3}, {LB + 3*4096 + 2048}
        v_add_u32 {vV['b']}, {sT3}, {vL16}
        s_lshl_b32 {sT0}, {sTT}, 11
        s_lshl_b32 {sT1}, {sFT}, 10
        s_add_u32 {sT2}, {sT0}, {sT1}
        s_add_u32 {sT2}, {sT2}, {QX}
        v_add_u32 {vA0}, {sT2}, {vL16}
        s_sub_u32 {sT3}, {sT1}, {sT0}
        s_add_u32 {sT3}, {sT3}, {QX + 3*2048}
        v_add_u32 v229, {sT3}, {vL16}
        v_mov_b32 {vBIG}, {hex(BIGNEG)}
        ''')
        for j in range(16):
            a(f'v_cndmask_b32 v{NM["a"]+j}, {vBIG}, 0, {m(j)}')
        for j in range(8):
            a(f'v_mov_b32 v{VB+j}, {sONE2}')
        a.wait_all(vm=False)
        a('s_barrier')
        a(f'ds_read_b128 {vr(Q["a"],4)}, {vA0}')
        qs = a(f'ds_read_b128 {vr(Q["b"],4)}, v229')

        def kread(st, buf):
            return a(f'ds_read_b128 {vr(buf,4)}, {vK[st[0]]} offset:{st[1]*4096}')

        def vread(st):
            a(f's_mov_b64 exec, {sLO16}')
            a(f'ds_read_b128 {vr(VB,4)}, {vV[st[0]]} offset:{st[1]*4096}')
            r = a(f'ds_read_b128 {vr(VB+4,4)}, {vV[st[0]]} offset:{st[1]*4096+1024}')
            a('s_mov_b64 exec, -1')
            return r

        def fix(st):
            s, i = st
            if (s == 'a' and i in (7, 6, 3, 2)) or (s == 'b' and i in (5, 4, 1, 0)):
                f = a.newlabel('fix')
                r = a.newlabel('fixr')
                a(f's_cmp_eq_i32 {sIA if s == "a" else sIB}, {i}\ns_cbranch_scc1 {f}')
                a.label(r)
                self.tail.append(f'{f}:\n    s_nop 15\n' + ''.join(f'    v_mov_b32 v{NM[s]+j}, {vBIG}\n' for j in range(16)) + f'    s_nop 3\n    s_branch {r}')

        def qk(st, sb, kb, C):
            a(f'{MF32} {vr(sb,16)}, {vr(kb,4)}, {vr(Q[st[0]],4)}, {C}')

        def pass1(stages, local, hook=None):
            n = len(stages)
            ks = {}
            for k in range(min(3, n)):
                ks[k] = kread(stages[k], KB[k % 3])
            acc = MX if local else DL
            first = {'a': local, 'b': local}

            def issue(k):
                st = stages[k]
                sb = S[k % 2]
                if local:
                    C = vr(NM['a'], 16) if st[1] == 8 else '0'
                else:
                    fix(st)
                    C = vr(NM[st[0]], 16)
                    if st[1] == 0:
                        for j in range(16):
                            a(f'v_cndmask_b32 v{sb+j}, v{NM[st[0]]+j}, {vBIG}, {m(j)}')
                        C = vr(sb, 16)
                a.wait(ks[k])
                qk(st, sb, KB[k % 3], C)
                if k + 3 < n:
                    ks[k+3] = kread(stages[k+3], KB[k % 3])
            issue(0)
            for k in range(n):
                if k + 1 < n:
                    issue(k + 1)
                if hook:
                    hook(k)
                s = S[k % 2]
                mx = acc[stages[k][0]]
                if first[stages[k][0]]:
                    first[stages[k][0]] = False
                    a(f'v_max3_f32 {mx}, v{s}, v{s+1}, v{s+2}')
                    for j in range(3, 15, 2):
                        a(f'v_max3_f32 {mx}, v{s+j}, v{s+j+1}, {mx}')
                    a(f'v_max_f32 {mx}, v{s+15}, {mx}')
                else:
                    for j in range(0, 16, 2):
                        a(f'v_max3_f32 {mx}, v{s+j}, v{s+j+1}, {mx}')
            for s_ in 'ab':
                mx = acc[s_]
                a(f'v_mov_b32 {vA4}, {mx}')
                a(f'v_permlane32_swap_b32 {mx}, {vA4}')
                a(f'v_max_f32 {mx}, {mx}, {vA4}')

        def pass2(stages, local, hook=None, pre=None):
            n = len(stages)
            ks = {}
            vs = {}
            first = {'a': local, 'b': local}
            ks[0] = kread(stages[0], KB[0])
            ks[1] = kread(stages[1], KB[1])
            vs[0] = vread(stages[0])
            if pre:
                pre()

            def issue(k):
                st = stages[k]
                sb = S[k % 2]
                if not local:
                    fix(st)
                C = vr(NM[st[0]], 16)
                if st[1] == 8:
                    for j in range(16):
                        a(f'v_cndmask_b32 v{sb+j}, {vBIG}, {MX[st[0]]}, {m(j)}')
                    C = vr(sb, 16)
                elif st[1] == 0:
                    for j in range(16):
                        a(f'v_cndmask_b32 v{sb+j}, v{NM[st[0]]+j}, {vBIG}, {m(j)}')
                    C = vr(sb, 16)
                a.wait(ks[k])
                qk(st, sb, KB[k % 2], C)
                if k + 2 < n:
                    ks[k+2] = kread(stages[k+2], KB[k % 2])

            def pv(k, half):
                st = stages[k]
                o = O[st[0]]
                C = vr(o, 16)
                if half == 0:
                    a.wait(vs[k])
                    if first[st[0]]:
                        first[st[0]] = False
                        C = '0'
                a(f'{MF32} {vr(o,16)}, {vr(VB+4*half,4)}, {vr(S[k%2]+4*half,4)}, {C}')
            issue(0)
            for k in range(n):
                s = S[k % 2]
                ops = []
                for j in range(16):
                    ops.append(f'v_exp_f32 v{s+j}, v{s+j}')
                    if j % 2 == 1 and j >= 3:
                        jj = (j - 3) // 2
                        ops.append(f'v_cvt_pk_bf16_f32 v{s+jj}, v{s+2*jj}, v{s+2*jj+1}')
                ops.append(f'v_cvt_pk_bf16_f32 v{s+7}, v{s+14}, v{s+15}')
                for i, o in enumerate(ops):
                    if k > 0 and i == 0:
                        pv(k-1, 0)
                    if k > 0 and i == 4:
                        pv(k-1, 1)
                        vs[k] = vread(stages[k])
                    if i == 9 and k + 1 < n:
                        issue(k + 1)
                    if hook and i in (14, 19):
                        hook(k)
                    a(o)
            pv(n-1, 0)
            pv(n-1, 1)

        loc = [('a', 8), ('b', 8), ('b', 7), ('b', 6)]
        hal = [('a', 7), ('b', 5), ('a', 6), ('b', 4), ('a', 5), ('b', 3), ('a', 4), ('b', 2), ('a', 3), ('b', 1), ('a', 2), ('b', 0), ('a', 1), ('a', 0)]
        a.wait(qs)
        pass1(loc, True)
        for s_ in 'ab':
            a(f'v_sub_f32 {MX[s_]}, 0, {MX[s_]}')
        late = a.newlabel('hlate')
        a.wait(hp)
        self.cmpflag(0)
        a(f's_mov_b32 {sHD}, 0\ns_cmp_eq_u64 vcc, 0\ns_cbranch_scc0 {late}')
        sv = a.vm
        self.halo_dma()
        a.vm = sv
        a(f's_mov_b32 {sHD}, 1')
        a.label(late)

        def setnm():
            for s_ in 'ba':
                for j in range(16):
                    a(f'v_mov_b32 v{NM[s_]+j}, {MX[s_]}')
        pass2(loc, True, pre=setnm)
        self.stamp('attl')
        done = a.newlabel('hdone')
        a(f's_cmp_eq_u32 {sHD}, 1\ns_cbranch_scc1 {done}')
        self.poll_loop(vA3)
        sv = a.vm
        self.halo_dma()
        a.vm = sv
        a.label(done)
        a(f'v_mov_b32 {DL["a"]}, 0\nv_mov_b32 {DL["b"]}, 0')
        a.wait_all()
        a('s_barrier')
        self.stamp('halo')
        self.wreg_bg(WOT, 0x10000, 0x4000, 8, lambda i, j: vr(X+8*i+4*j, 4))
        self.w1_bg((2, 3))
        if l == 0:
            self.wreg_bg(W2T, 0x38000, 28*2048, self.opt.get('w2a', 4), lambda i, j: ar(8*i+4*j, 4))
        nb = len(self.bgq)
        pass1(hal, False, hook=lambda k: self.bg(1))
        self.stamp('att1')

        def rescale():
            for s_ in 'ab':
                a(f'v_sub_f32 {MX[s_]}, {MX[s_]}, {DL[s_]}')
                a(f'v_sub_f32 {DL[s_]}, 0, {DL[s_]}')
                a(f'v_exp_f32 {DL[s_]}, {DL[s_]}')
            setnm()
            for s_ in 'ab':
                for j in range(9):
                    a(f'v_mul_f32 v{O[s_]+j}, v{O[s_]+j}, {DL[s_]}')
        per = -(-len(self.bgq) // 26)
        pass2(hal, False, hook=lambda k: self.bg(per), pre=rescale)
        assert not self.bgq
        a(f'''
        s_lshl_b32 {sT1}, {sM}, 11
        s_add_u32 {sT0}, {sGB}, {sT1}
        s_lshl_b32 {sT1}, {sFT}, 10
        s_add_u32 {sT0}, {sT0}, {sT1}
        s_add_u32 {sT0}, {sT0}, {OF + l*0x20000}
        s_lshl_b32 {sT1}, {sTT}, 15
        s_add_u32 {sT2}, {sT0}, {sT1}
        v_add_u32 {vA1}, {sT2}, {vL16}
        s_sub_u32 {sT2}, {sT0}, {sT1}
        s_add_u32 {sT2}, {sT2}, {3*32768}
        v_add_u32 {vA2}, {sT2}, {vL16}
        ''')
        for s_, va in (('b', vA2), ('a', vA1)):
            o = O[s_]
            a(f'v_rcp_f32 {vA0}, v{o+8}')
            for j in range(8):
                a(f'v_mul_f32 v{o+j}, v{o+j}, {vA0}')
            for j in range(4):
                a(f'v_cvt_pk_bf16_f32 v{o+j}, v{o+2*j}, v{o+2*j+1}')
            st = self.stores([f'global_store_dwordx4 {va}, {vr(o,4)}, {sWS}'])
        a(f'''
        s_lshl_b32 {sT0}, {sG}, 2
        s_lshr_b32 {sT1}, {sM}, 2
        s_add_u32 {sT0}, {sT0}, {sT1}
        s_lshl_b32 {sT0}, {sT0}, 7
        s_and_b32 {sT1}, {sM}, 3
        s_lshl_b32 {sT1}, {sT1}, 2
        s_add_u32 {sT1}, {sT1}, {sW}
        s_lshl_b32 {sT1}, {sT1}, 2
        s_add_u32 {sT0}, {sT0}, {sT1}
        s_add_u32 {sT0}, {sT0}, {F_O + l*0x4000}
        v_mov_b32 {vA3}, {sT0}
        ''')
        self.ost = st

    def unpack_res(self, dst):
        a = self.a
        for i in range(8):
            a(f'v_lshlrev_b32 v{dst+2*i}, 16, v{RES+i}')
            a(f'v_and_b32 v{dst+2*i+1}, 0xffff0000, v{RES+i}')

    def act_addr(self, tile_stride, base_lines, bias):
        a = self.a
        a(base_lines)
        a(f'''
        s_mul_i32 {sT1}, {sTT}, {tile_stride}
        s_add_u32 {sT2}, {sT0}, {sT1}
        s_sub_u32 {sT1}, {tile_stride}, {sT1}
        s_add_u32 {sT3}, {sT0}, {sT1}
        s_add_u32 {sT2}, {sT2}, {bias}
        s_add_u32 {sT3}, {sT3}, {bias}
        v_add_u32 {vA1}, {sT2}, {vL16}
        v_add_u32 {vA2}, {sT3}, {vL16}
        ''')

    def reduce_addr(self, RA):
        a = self.a
        for i in range(4):
            a(f'''
            s_xor_b32 {sT0}, {sW}, {i}
            s_mul_i32 {sT0}, {sT0}, {3*4096}
            s_add_u32 {sT0}, {sT0}, {LB + max(i-1, 0)*4096}
            v_add_u32 v{RA+i}, {sT0}, {vL16}
            ''')

    def reduce64(self, TMP, RA, late):
        a = self.a
        w = [f'ds_write_b128 v{RA+i}, {vr(ACC+16*i+4*j,4)} offset:{j*1024}' for i in range(1, 4) for j in range(4)]
        k = 0
        while w or late:
            if late:
                a(late.pop(0))
            for _ in range(2 if k % 2 else 1):
                if w:
                    a(w.pop(0))
            k += 1
        a.wait_all(vm=False)
        a('s_barrier')
        rd = []
        for i in range(12):
            rd.append(a(f'ds_read_b128 {vr(TMP+4*i,4)}, v{RA} offset:{(i%3)*4096+(i//3)*1024}'))
        for q in range(4):
            for i in range(3):
                a.wait(rd[3*q+i])
                for j in range(4):
                    r = ACC + q*4 + j
                    a(f'v_add_f32 v{r}, v{r}, v{TMP+4*(3*q+i)+j}')
            for i in (2*q, 2*q+1):
                a(f'v_cvt_pk_bf16_f32 v{RES+i}, v{ACC+2*i}, v{ACC+2*i+1}')

    def xpub_addr(self, inst, PA):
        a = self.a
        a(f'''
        s_and_b32 {sT1}, {sTQ}, 3
        s_lshl_b32 {sT1}, {sT1}, 15
        s_add_u32 {sT0}, {sGB}, {sT1}
        s_lshl_b32 {sT1}, {sPQ}, 11
        s_add_u32 {sT0}, {sT0}, {sT1}
        s_add_u32 {sT0}, {sT0}, {XF + (inst-1)*0x20000}
        v_add_u32 v{PA}, {sT0}, {vL16}
        s_lshl_b32 {sT0}, {sTQ}, 12
        s_lshl_b32 {sT1}, {sPQ}, 8
        s_add_u32 {sT0}, {sT0}, {sT1}
        s_add_u32 {sT0}, {sT0}, {ST + inst*0x40000}
        v_lshlrev_b32 v{PA+1}, 3, {vT}
        v_lshl_add_u32 v{PA+1}, {vH}, 2, v{PA+1}
        v_add_u32 v{PA+1}, {sT0}, v{PA+1}
        s_lshl_b32 {sT0}, {sTQ}, 7
        s_lshl_b32 {sT1}, {sPQ}, 2
        s_add_u32 {sT0}, {sT0}, {sT1}
        s_add_u32 {sT0}, {sT0}, {F_X + inst*0x2000}
        v_mov_b32 v{PA+2}, {sT0}
        ''')

    def x_publish(self, inst, PA):
        a = self.a
        self.stores([f'global_store_dwordx4 v{PA}, {vr(RES,4)}, {sWS}',
                     f'global_store_dwordx4 v{PA}, {vr(RES+4,4)}, {sWS} offset:1024'])
        s, q = vA0, vA4
        a(f'v_mov_b32 {s}, 0\nv_mov_b32 {q}, 0')
        for i in range(8):
            a(f'v_dot2_f32_bf16 {s}, v{RES+i}, {sONE2}, {s}')
            a(f'v_dot2_f32_bf16 {q}, v{RES+i}, v{RES+i}, {q}')
        a(f'v_permlane32_swap_b32 {s}, {q}\ns_nop 1\nv_add_f32 {s}, {s}, {q}')
        st = self.stores([f'global_store_dword v{PA+1}, {s}, {sWS}'])
        self.xaddr(inst)
        a.wait(st)
        self.flag_store(f'v{PA+2}')

    def p2(self, l):
        a = self.a
        RA, PA = 228, 232
        AB = 96
        if l == 0:
            a.wait(self.rs)
        self.act_addr(0x8000, f'''
        s_lshl_b32 {sT1}, {sRH}, 16
        s_add_u32 {sT0}, {sGB}, {sT1}
        s_add_u32 {sT0}, {sT0}, {sW8K}
        s_add_u32 {sT0}, {sT0}, {OF + l*0x20000}
        ''', 4096)
        a(f'''
        s_lshl_b32 {sT0}, {sG}, 2
        s_add_u32 {sT0}, {sT0}, {sW}
        s_lshl_b32 {sT0}, {sT0}, 7
        s_add_u32 {sT0}, {sT0}, {F_O + l*0x4000}
        v_and_b32 {vA0}, 15, {vLANE}
        v_lshl_add_u32 {vA0}, {vA0}, 2, {sT0}
        ''')
        self.reduce_addr(RA)
        self.xpub_addr(2*l+1, PA)
        a.wait(self.ost)
        self.flag_store(vA3)
        self.stamp('att2')
        self.unpack_res(ACC)
        self.poll_loop(vA0)
        self.stamp('oflag')
        seqs = {}
        for k in range(8):
            b = AB + 8*k
            s0 = a(f'global_load_dwordx4 {vr(b,4)}, {vA1}, {sWS} offset:{k*1024-4096} sc1')
            s1 = a(f'global_load_dwordx4 {vr(b+4,4)}, {vA2}, {sWS} offset:{k*1024-4096} sc1')
            seqs[k] = (s0, s1)
        if l == 0:
            self.wreg_bg(W2T, 0x38000, 28*2048, self.opt.get('w2b', 12), lambda i, j: ar(8*i+4*j, 4), lo=self.opt.get('w2a', 4))
            self.bg(100)
        wreg = lambda k, j: vr(X + 8*k + 4*j, 4)
        late = []
        for k in range(8):
            b = AB + 8*k
            c = lambda i: '0' if k == 0 else vr(ACC+16*i, 16)
            a.wait(seqs[k][0])
            a(f'{MF32} {vr(ACC+16,16)}, {wreg(k,1)}, {vr(b,4)}, {c(1)}')
            late.append(f'{MF32} {vr(ACC,16)}, {wreg(k,0)}, {vr(b,4)}, {vr(ACC,16)}')
            a.wait(seqs[k][1])
            a(f'{MF32} {vr(ACC+32,16)}, {wreg(k,0)}, {vr(b+4,4)}, {c(2)}')
            a(f'{MF32} {vr(ACC+48,16)}, {wreg(k,1)}, {vr(b+4,4)}, {c(3)}')
        self.stamp('p2mm')
        a('s_barrier')
        a(late.pop(0))
        a(late.pop(0))
        self.reduce64(X, RA, late)
        self.stamp('p2red')
        self.x_publish(2*l+1, PA)
        self.stamp('p2')

    def p3(self, l):
        a = self.a
        WA = ['v232', 'v233']
        SD = 236
        WB = ACC + 48
        GT = 236
        vHA = 'v234'
        vHF = 'v235'

        def wr(dst, s, c):
            if c < 2:
                return a(f'ds_read_b128 {vr(dst,4)}, {vL16} offset:{c*32768 + s*1024}')
            if c == 2:
                return a(f'ds_read_b128 {vr(dst,4)}, {WA[0]} offset:{s*1024}')
            return a(f'ds_read_b128 {vr(dst,4)}, {WA[1]} offset:{s*512}')
        a(f'''
        v_add_u32 {WA[0]}, {A2}, {vL16}
        v_and_b32 {vA0}, 15, {vLANE}
        v_lshl_add_u32 {vA0}, {vH}, 4, {vA0}
        v_lshlrev_b32 {vA0}, 4, {vA0}
        v_add_u32 {WA[1]}, {A3}, {vA0}
        s_mul_i32 {sT1}, {sW}, {112*1024}
        s_add_u32 {sT0}, {sGB}, {sT1}
        s_mul_i32 {sT1}, {sM}, {7*1024}
        s_add_u32 {sT0}, {sT0}, {sT1}
        s_add_u32 {sT0}, {sT0}, {HF + l*0x70000 + 4096}
        v_add_u32 {vHA}, {sT0}, {vL16}
        s_lshl_b32 {sT0}, {sG}, 1
        s_add_u32 {sT0}, {sT0}, {sTT}
        s_lshl_b32 {sT0}, {sT0}, 2
        s_lshr_b32 {sT1}, {sM}, 2
        s_add_u32 {sT0}, {sT0}, {sT1}
        s_lshl_b32 {sT0}, {sT0}, 7
        s_and_b32 {sT1}, {sM}, 3
        s_lshl_b32 {sT1}, {sT1}, 1
        s_add_u32 {sT1}, {sT1}, {sFT}
        s_lshl_b32 {sT1}, {sT1}, 2
        s_add_u32 {sT0}, {sT0}, {sT1}
        s_add_u32 {sT0}, {sT0}, {F_H + l*0x8000}
        v_mov_b32 {vHF}, {sT0}
        ''')
        sl, xs = self.xload(2*l+1, SD)
        if l == 0:
            self.wreg_bg(W2T, 0x38000, 28*2048, 28, lambda i, j: ar(8*i+4*j, 4), lo=self.opt.get('w2b', 12))
            PO, CS, CB = ACC, ACC + 4, ACC + 8
            self.pattern_ones(PO)
            a(f'''
            s_cmp_eq_u32 {sW}, 3
            s_cselect_b64 vcc, -1, 0
            s_cselect_b32 {sT2}, 9, 10
            s_lshl_b32 {sT2}, 1, {sT2}
            s_lshl_b32 {sT0}, {sW}, 15
            v_add_u32 {vA0}, {sT0}, {vL16}
            v_cndmask_b32 {vA0}, {vA0}, {WA[1]}, vcc
            v_and_b32 {vA2}, 15, {vLANE}
            v_cndmask_b32 {vA2}, {vT}, {vA2}, vcc
            s_mul_i32 {sT0}, {sM}, 224
            s_lshl_b32 {sT1}, {sW}, 6
            s_add_u32 {sT0}, {sT0}, {sT1}
            v_lshl_add_u32 {vA2}, {vA2}, 1, {sT0}
            ''')
            bl = a(f'global_load_ushort {vA4}, {vA2}, {sB1}')
            rd = {}

            def crd(s):
                rd[s] = a(f'ds_read_b128 {vr(CB+4*(s%8),4)}, {vA0}')
                a(f'v_add_u32 {vA0}, {sT2}, {vA0}')
            for s in range(8):
                crd(s)
            for s in range(32):
                a.wait(rd[s])
                a(f'{MF16} {vr(CS,4)}, {vr(PO,4)}, {vr(CB+4*(s%8),4)}, {"0" if s == 0 else vr(CS,4)}')
                if s + 8 < 32:
                    crd(s + 8)
            self.ext_w(f'v{CS}', vA0, CB+2)
        acc = [ACC, ACC + 16, ACC + 32, ACC]

        def gelu(c):
            A = acc[c]
            n = 8 if c == 3 else 16
            o = []
            P = 224 if c % 2 else GT + 4
            for j0 in range(0, n, 4):
                t = [f'v{GT+i}' for i in range(4)]
                x = [f'v{A+j0+i}' for i in range(4)]
                for i in range(4):
                    o.append(f'v_mul_f32 {t[i]}, {x[i]}, {x[i]}')
                for i in range(4):
                    o.append(f'v_fma_f32 {t[i]}, {t[i]}, {vK1}, {vK0}')
                for i in range(4):
                    o.append(f'v_mul_f32 {t[i]}, {t[i]}, {x[i]}')
                for i in range(4):
                    o.append(f'v_exp_f32 {t[i]}, {t[i]}')
                for i in range(4):
                    o.append(f'v_fma_f32 {t[i]}, {t[i]}, {vS}, {vS}')
                for i in range(4):
                    o.append(f'v_rcp_f32 {t[i]}, {t[i]}')
                for i in range(4):
                    o.append(f'v_mul_f32 {t[i]}, {t[i]}, {x[i]}')
                o.append(f'v_cvt_pk_bf16_f32 v{P+j0//2}, {t[0]}, {t[1]}')
                o.append(f'v_cvt_pk_bf16_f32 v{P+j0//2+1}, {t[2]}, {t[3]}')

            def st():
                ls = [f'global_store_dwordx4 {vHA}, {vr(P,4)}, {sWS} offset:{2*c*1024-4096}']
                if c < 3:
                    ls.append(f'global_store_dwordx4 {vHA}, {vr(P+4,4)}, {sWS} offset:{(2*c+1)*1024-4096}')
                self.hst = self.stores(ls)
            o.append(('call', st))
            return o

        def ext(c):
            xe = XE + 2 if c % 2 == 0 else XE
            a(f'{MF32} {vr(acc[c],16)}, {ar(AEXT+4*(c//2),4)}, {vr(xe,4)}, {vr(acc[c],16)}')
        wl = {}
        for s in range(2):
            b = WB + 8*(s % 3)
            wl[s] = (wr(b, s, 0), wr(b+4, s, 1))
        so = self.stats_ops(SD, True)
        for s in range(32):
            b = WB + 8*(s % 3)
            a.wait(xs[s], wl[s][1])
            a(f'{MF32} {vr(acc[0],16)}, {vr(b,4)}, {vr(X+4*s,4)}, {"0" if s == 0 else vr(acc[0],16)}')
            b2 = WB + 8*((s+2) % 3)
            if s + 2 < 32:
                w0 = wr(b2, s+2, 0)
            if s >= 8:
                for o in so[:2]:
                    a(o)
                so = so[2:]
            a(f'{MF32} {vr(acc[1],16)}, {vr(b+4,4)}, {vr(X+4*s,4)}, {"0" if s == 0 else vr(acc[1],16)}')
            if s + 2 < 32:
                wl[s+2] = (w0, wr(b2+4, s+2, 1))
            if s >= 16:
                self.bg(1)
        for o in so:
            a(o)
        if l == 0:
            a.wait(bl)
            a(f'''
            v_lshl_or_b32 {vA1}, {vA4}, 16, {vA4}
            s_mul_i32 {sT0}, {sW}, {3*4096}
            s_add_u32 {sT0}, {sT0}, {LB}
            v_lshl_add_u32 {vA2}, {vLANE}, 3, {sT0}
            ds_write_b64 {vA2}, v[26:27]
            v_lshlrev_b32 {vA2}, 3, {vLANE}
            v_add_u32 {vA2}, {LB}, {vA2}
            s_waitcnt lgkmcnt(0)
            s_barrier
            ''')
            for c in range(4):
                a(f'ds_read_b64 {ar(AEXT+2*c,2)}, {vA2} offset:{c*3*4096}')
            a('s_waitcnt lgkmcnt(0)')

            def wsetup():
                a(f'''
                v_lshrrev_b32 {vBG1}, 2, {vLANE}
                v_and_b32 {vBG2}, 3, {vLANE}
                s_movk_i32 {sT0}, 3072
                v_mul_u32_u24 {vBG1}, {sT0}, {vBG1}
                v_lshl_add_u32 {vBG1}, {vBG2}, 4, {vBG1}
                s_mul_i32 {sT0}, {sW}, 49152
                s_lshl_b32 {sT1}, {sM}, 6
                s_add_u32 {sT0}, {sT0}, {sT1}
                v_add_u32 {vBG0}, {sT0}, {vBG1}
                ''')
            self.bgq.append(wsetup)
            for q in range(8):
                for p in (1, 2):
                    self.bgq.append(lambda q=q, p=p: self.wqkv_dma1(vBG0, vBG1, q, p))
        ext(0)
        ext(1)
        self.stamp('p3a')

        def tilepass(c, ops, hooks):
            wl = {}
            for s in range(3):
                wl[s] = wr(WB + 4*(s % 4), s, c)
            per = -(-len(ops) // hooks.get('n', 31))
            for s in range(32):
                a.wait(wl[s])
                a(f'{MF32} {vr(acc[c],16)}, {vr(WB+4*(s%4),4)}, {vr(X+4*s,4)}, {"0" if s == 0 else vr(acc[c],16)}')
                if s + 3 < 32:
                    wl[s+3] = wr(WB + 4*((s+3) % 4), s+3, c)
                if s >= 1:
                    for o in ops[:per]:
                        self.do(o)
                    ops = ops[per:]
                if s % 2 == 0:
                    self.bg(1)
                if s in hooks:
                    hooks[s]()
            assert not ops
            ext(c)
        tilepass(2, gelu(0) + gelu(1), {})
        self.stamp('p3b')
        hA = self.hst

        def flagA():
            a.wait(hA)
            self.flag_store(vHF)

        def p4pre():
            self.act_addr(112*1024, f'''
            s_mul_i32 {sT1}, {sRH}, {2*112*1024}
            s_add_u32 {sT0}, {sGB}, {sT1}
            s_mul_i32 {sT1}, {sW}, {28*1024}
            s_add_u32 {sT0}, {sT0}, {sT1}
            s_add_u32 {sT0}, {sT0}, {HF + l*0x70000}
            ''', 3072)
            a(f'''
            s_lshl_b32 {sT0}, {sG}, 1
            s_add_u32 {sT0}, {sT0}, {sRH}
            s_lshl_b32 {sT0}, {sT0}, 2
            s_add_u32 {sT0}, {sT0}, {sW}
            s_lshl_b32 {sT0}, {sT0}, 7
            s_add_u32 {sT0}, {sT0}, {F_H + l*0x8000}
            v_and_b32 {vA3}, 7, {vLANE}
            v_lshl_add_u32 {vA3}, {vA3}, 2, {sT0}
            s_lshl_b32 {sT0}, {sPQ}, 6
            v_lshl_add_u32 {vA0}, {vH}, 3, {sT0}
            ''')
            for i in range(4):
                self.bl = a(f'global_load_dwordx2 {vr(ACC+16+2*i,2)}, {vA0}, {sB2} offset:{16*i}')

        def pollA():
            self.hp = self.poll_issue(vA3)
        tilepass(3, gelu(2), {12: flagA, 20: p4pre, 30: pollA})
        self.bg(100)
        self.stamp('p3c')
        self.g3 = gelu(3)
        self.vHF = vHF

    def p4(self, l):
        a = self.a
        RA, PA = 224, 228
        vHF = self.vHF
        R = 16
        order = [(mm, j) for mm in range(4) for j in range(4)] + [(mm, j) for mm in range(4) for j in range(4, 7)]
        seqs = {}
        cur = [0]

        def ld(n):
            mm, j = order[n]
            if mm != cur[0]:
                d = (mm - cur[0]) * 7168
                a(f'v_add_u32 {vA1}, {hx(d)}, {vA1}\nv_add_u32 {vA2}, {hx(d)}, {vA2}')
                cur[0] = mm
            b = X + 8*(n % R)
            s0 = a(f'global_load_dwordx4 {vr(b,4)}, {vA1}, {sWS} offset:{j*1024-3072} sc1')
            s1 = a(f'global_load_dwordx4 {vr(b+4,4)}, {vA2}, {sWS} offset:{j*1024-3072} sc1')
            seqs[n] = (s0, s1)
        if l == 0:
            a('s_barrier')
        self.poll_check(self.hp, vA3)
        self.stamp('hflag')
        g3 = self.g3
        for n in range(4):
            ld(n)
            for o in g3[:16]:
                self.do(o)
            g3 = g3[16:]
        assert not g3
        hB = self.hst
        for n in range(4, 12):
            ld(n)
        a(f'v_add_u32 {vA3}, 0x4000, {vA3}\nv_add_u32 {vHF}, 0x4000, {vHF}')
        BT = ACC + 16
        a.wait(self.bl)
        self.unpack_res(ACC)
        for i in range(8):
            a(f'v_lshlrev_b32 {vA0}, 16, v{BT+i}')
            a(f'v_and_b32 {vA4}, 0xffff0000, v{BT+i}')
            a(f'v_add_f32 v{ACC+2*i}, v{ACC+2*i}, {vA0}')
            a(f'v_add_f32 v{ACC+2*i+1}, v{ACC+2*i+1}, {vA4}')
        self.reduce_addr(RA)
        if l == 0:
            self.xpub_addr(2, PA)
        else:
            self.res_addr(f'v{PA}')
        late = []
        PB = self.opt.get('pb', 6)
        for n in range(28):
            mm, j = order[n]
            k = 7*mm + j
            b = X + 8*(n % R)
            wreg = lambda jj: ar(8*k + 4*jj, 4)
            c = lambda i: '0' if n == 0 else vr(ACC+16*i, 16)
            a.wait(seqs[n][0])
            a(f'{MF32} {vr(ACC+16,16)}, {wreg(1)}, {vr(b,4)}, {c(1)}')
            m0 = f'{MF32} {vr(ACC,16)}, {wreg(0)}, {vr(b,4)}, {vr(ACC,16)}'
            if n >= 20:
                late.append(m0)
            else:
                a(m0)
            a.wait(seqs[n][1])
            a(f'{MF32} {vr(ACC+32,16)}, {wreg(0)}, {vr(b+4,4)}, {c(2)}')
            a(f'{MF32} {vr(ACC+48,16)}, {wreg(1)}, {vr(b+4,4)}, {c(3)}')
            if n == 3:
                a.wait(hB)
                self.flag_store(vHF)
            if n == PB:
                pb = self.poll_issue(vA3)
                for nn in range(12, 16):
                    ld(nn)
            if n == 11:
                self.poll_check(pb, vA3)
                self.stamp('hflagB')
                for nn in range(16, 28):
                    ld(nn)
                if l == 0:
                    for q in range(8):
                        self.bgq.append(lambda q=q: self.wqkv_dma1(vBG0, vBG1, q, 0))
            if n > 11:
                self.bg(1)
        self.stamp('p4mm')
        a(late.pop(0))
        a(late.pop(0))
        self.reduce64(X, RA, late)
        self.stamp('p4red')
        if l == 0:
            self.x_publish(2, PA)
            self.stamp('p4')
        else:
            for i in range(4):
                a(f'global_store_dwordx2 v{PA}, {vr(RES+2*i,2)}, {sOUT} offset:{16*i}')
            self.stamp('end')

    def finish(self):
        a = self.a
        sk = a.newlabel('noep')
        a(f'''
        s_or_b32 {sT0}, s2, {sW}
        s_cmp_lg_u32 {sT0}, 0
        s_cbranch_scc1 {sk}
        v_mov_b32 {vA0}, 0
        v_mov_b32 {vA1}, {sEP}
        global_store_dword {vA0}, {vA1}, {sWS} sc1
        ''')
        a.label(sk)
        if self.prof:
            a(f'''
            s_lshl_b32 {sT0}, s2, 2
            s_add_u32 {sT0}, {sT0}, {sW}
            s_lshl_b32 {sT0}, {sT0}, 8
            s_add_u32 {sT0}, {sT0}, {PROF}
            v_lshl_add_u32 {vA0}, {vLANE}, 2, {sT0}
            global_store_dword {vA0}, v0, {sWS}
            ''')


if __name__ == '__main__':
    prof = 'prof' in sys.argv
    out = sys.argv[1] if len(sys.argv) > 1 else 'k.s'
    opt = {}
    for x in sys.argv[2:]:
        if '=' in x:
            k, v = x.split('=')
            opt[k] = int(v)
    g = Gen(prof=prof, opt=opt)
    t = g.build()
    open(out, 'w').write(t)
    print('instrs', g.a.ninstr, 'nops', g.a.nops, 'bytes', len(t))
    open(out + '.names', 'w').write(' '.join(g.names))
```

```python
import sys, math, struct
from asm2 import *

NAME = 'interleave_layers__sliding_block__mixer_channel_mlp__prompt_kernel'

FL = 0x1000
F_WT = FL
F_X = FL + 0x8000
F_O = FL + 0x10000
F_H = FL + 0x18000
F_KV = FL + 0x28000
ST = 0x80000
PROF = 0x180000
WT = 0x200000
W1T = WT
W2T = WT + 0x1C0000
WOT = WT + 0x380000
G0 = 0x600000
GB = 0x200000
XF = 0x0
OF = 0x60000
KV = 0xA0000
HF = 0x120000

A0, A1, A2, A3 = 0, 32768, 65536, 98304
LB = 114688
RING = 98304
QX = A3
RB = A3 + 8192

sX, sWQKV, sWO, sW1, sB1, sW2, sB2, sOUT, sDBG, sWS = 's[4:5]', 's[6:7]', 's[8:9]', 's[12:13]', 's[14:15]', 's[16:17]', 's[18:19]', 's[20:21]', 's[22:23]', 's[24:25]'
sG, sM, sW, sRH, sCT, sEP, sMODE, sGB = 's26', 's27', 's28', 's29', 's30', 's31', 's33', 's34'
sTT, sFT, sLIM, sONE2, sHM = 's35', 's36', 's37', 's38', 's[40:41]'
sLO16 = 's[42:43]'
sT0, sT1, sT2, sT3, sT4, sT5 = 's44', 's45', 's46', 's47', 's48', 's49'
sRING = 's50'
sCNT = 's51'
sXCC = 's52'
sPT = 's[54:55]'
sPI = 's56'
sIA, sIB = 's57', 's58'
sW1K = 's59'
sW8K = 's60'
sHD = 's61'
sTQ = 's62'
sPQ = 's63'
MASK0 = 64

vLANE, vL16, vT, vH = 'v1', 'v2', 'v3', 'v4'
vTR0, vTR1 = 'v5', 'v6'
vHZ = 'v7'
RES = 8
XE = 16
vR, vS, vK0, vK1 = 'v22', 'v23', 'v24', 'v25'
vA0, vA1, vA2, vA3, vA4, vA5 = 'v26', 'v27', 'v28', 'v29', 'v30', 'v31'
X = 32
ACC = 160
AEXT = 224
vBG0, vBG1, vBG2 = 'v253', 'v254', 'v255'

BIGNEG = 0xF149F2CA


def vr(b, n):
    return f'v[{b}:{b+n-1}]' if n > 1 else f'v{b}'


def ar(b, n):
    return f'a[{b}:{b+n-1}]' if n > 1 else f'a{b}'


def f2h(x):
    return hex(struct.unpack('<I', struct.pack('<f', x))[0])


def hx(x):
    return hex(x & 0xffffffff)


GK0 = -2.0 * math.sqrt(2.0 / math.pi) * math.log2(math.e)
GK1 = GK0 * 0.044715
MF32 = 'v_mfma_f32_32x32x16_bf16'
MF16 = 'v_mfma_f32_16x16x32_bf16'


class Gen:
    def __init__(self, prof=False, opt=None):
        self.a = Asm()
        self.prof = prof
        self.names = []
        self.bgq = []
        self.tail = []
        self.opt = opt or {}
        ru = self.opt.get('reuse', 1)
        self.hs = 0 if ru else 0x70000
        self.os = 0 if ru else 0x20000
        self.xo = {1: 0, 2: 0 if ru else 0x20000, 3: 0 if ru else 0x40000}
        self.ss = 0 if ru else 0x40000

    def stamp(self, name=''):
        if not self.prof:
            return
        a = self.a
        self.names.append(name)
        n = len(self.names) - 1
        a(f'''
        s_memtime {sPT}
        s_waitcnt lgkmcnt(0)
        v_writelane_b32 v0, s54, {n}
        ''')

    def bg(self, n=1):
        for _ in range(n):
            if self.bgq:
                self.bgq.pop(0)()

    def poll_loop(self, vaddr, shift=0):
        a = self.a
        lp = a.newlabel('poll')
        dn = a.newlabel('polld')
        a(f's_mov_b32 {sCNT}, 0')
        a.label(lp)
        a(f'global_load_dword {vA5}, {vaddr}, {sWS} sc1', count=False)
        a('s_waitcnt vmcnt(0)')
        self.cmpflag(shift)
        a(f'''
        s_add_u32 {sCNT}, {sCNT}, 1
        s_cmp_eq_u64 vcc, 0
        s_cbranch_scc1 {dn}
        s_cmp_lt_u32 {sCNT}, {sLIM}
        s_cbranch_scc1 {lp}
        s_mov_b32 {sLIM}, 1
        ''')
        a.label(dn)

    def cmpflag(self, shift):
        a = self.a
        if shift:
            a(f'v_xor_b32 {vA4}, {sEP}, {vA5}')
            a(f'v_cmp_le_u32 vcc, {1 << shift}, {vA4}')
        else:
            a(f'v_cmp_ne_u32 vcc, {sEP}, {vA5}')

    def poll_issue(self, vaddr):
        return self.a(f'global_load_dword {vA5}, {vaddr}, {sWS} sc1')

    def poll_check(self, seq, vaddr, shift=0):
        a = self.a
        ok = a.newlabel('pok')
        a.wait(seq)
        self.cmpflag(shift)
        a(f's_nop 0\ns_cmp_eq_u64 vcc, 0\ns_cbranch_scc1 {ok}')
        sv = (a.vm_done, a.lg_done)
        self.poll_loop(vaddr, shift)
        a.vm_done, a.lg_done = sv
        a.label(ok)

    def stores(self, lines):
        a = self.a
        sl = a.newlabel('slow')
        en = a.newlabel('sten')
        a(f's_cmp_eq_u32 {sMODE}, 1')
        a(f's_cbranch_scc0 {sl}')
        seq = None
        for ln in lines:
            seq = a(ln)
        a.label(en)
        self.tail.append(f'{sl}:\n    s_nop 15\n' + ''.join(f'    {ln} sc1\n' for ln in lines) + f'    s_nop 1\n    s_branch {en}')
        return seq

    def flag_store(self, vaddr, slow=False, val=None):
        a = self.a
        a(f'v_mov_b32 {vA4}, {val or sEP}')
        ln = f'global_store_dword {vaddr}, {vA4}, {sWS}'
        if slow:
            a(ln + ' sc1')
        else:
            self.stores([ln])

    def stats_load(self, inst, dst):
        a = self.a
        seq = None
        for j in range(8):
            seq = a(f'global_load_dwordx2 {vr(dst+2*j,2)}, {vA2}, {sWS} offset:{j*256} sc1')
        return seq

    def stats_ops(self, src, mlp, summed=False):
        o = []
        S, Q = f'v{src}', f'v{src+1}'
        if not summed:
            for j in range(1, 8):
                o.append(f'v_add_f32 {S}, {S}, v{src+2*j}')
                o.append(f'v_add_f32 {Q}, {Q}, v{src+2*j+1}')
        t0, t1, t2, t3 = [f'v{src+i}' for i in (2, 3, 4, 5)]
        o += [
            f'v_permlane32_swap_b32 {S}, {Q}',
            f'v_add_f32 {S}, {S}, {Q}',
            f'v_mov_b32 {Q}, {S}',
            f'v_permlane32_swap_b32 {S}, {Q}',
            f'v_mul_f32 {S}, 0xbb000000, {S}',
            f'v_mul_f32 {t0}, {S}, {S}',
            f'v_mul_f32 {Q}, 0x3b000000, {Q}',
            f'v_sub_f32 {Q}, {Q}, {t0}',
            f'v_max_f32 {Q}, 0, {Q}',
            f'v_add_f32 {t0}, 0x3727c5ac, {Q}',
            f'v_rsq_f32 {vR}, {t0}',
            f'v_cvt_pk_bf16_f32 {t1}, {S}, {S}',
            f'v_lshlrev_b32 {t1}, 16, {t1}',
            f'v_sub_f32 {t1}, {S}, {t1}',
            f'v_mul_f32 {t1}, {t1}, {vHZ}',
            f'v_cvt_pk_bf16_f32 v{XE+2}, {S}, {t1}',
        ]
        if mlp:
            o += [
                f'v_mul_f32 {t2}, {vR}, {vR}',
                f'v_mul_f32 {vS}, {t0}, {vR}',
                f'v_mov_b32 {t3}, 0x3727c5ac',
                f'v_fma_f32 {t2}, {Q}, {t2}, {t3}',
                f'v_rsq_f32 {t3}, {t2}',
                f'v_mul_f32 {vS}, {vS}, {t2}',
                f'v_mul_f32 {vR}, {vR}, {t3}',
                f'v_mul_f32 {vS}, {vS}, {t3}',
                f'v_cvt_pk_bf16_f32 {t1}, {vS}, {vS}',
                f'v_lshlrev_b32 {t1}, 16, {t1}',
                f'v_sub_f32 {t1}, {vS}, {t1}',
                f'v_mul_f32 {t1}, {t1}, {vHZ}',
                f'v_mul_f32 {t2}, {vS}, {vHZ}',
                f'v_cvt_pk_bf16_f32 v{XE+3}, {t2}, {t1}',
                f'v_mul_f32 {t0}, {vR}, {vR}',
                f'v_mul_f32 {vK0}, {f2h(GK0)}, {vR}',
                f'v_mul_f32 {t0}, {t0}, {vR}',
                f'v_mul_f32 {vK1}, {f2h(GK1)}, {t0}',
            ]
        else:
            o += [f'v_mov_b32 v{XE+3}, 0']
        return o

    def ext_w(self, c, dst, tmp):
        a = self.a
        t0, t1 = f'v{tmp}', f'v{tmp+1}'
        a(f'''
        v_cvt_pk_bf16_f32 {t0}, {c}, {c}
        v_lshlrev_b32 {t0}, 16, {t0}
        v_sub_f32 {t0}, {c}, {t0}
        v_cndmask_b32 {t0}, {c}, {t0}, {sHM}
        v_mul_f32 {t1}, {c}, {vHZ}
        v_cvt_pk_bf16_f32 {dst}, {t0}, {t1}
        ''')

    def trw(self, dst, s, part):
        a = self.a
        b, off = {0: (vTR1, 0), 1: (vTR0, A0), 2: (vTR0, A1)}[part]
        off += s * 1024
        a(f'ds_read_b64_tr_b16 {vr(dst,2)}, {b} offset:{off}')
        return a(f'ds_read_b64_tr_b16 {vr(dst+2,2)}, {b} offset:{off+512}')

    def wqkv_dma1(self, vsrc, vtmp, q, p):
        a = self.a
        base = {0: A2, 1: A0, 2: A1}[p]
        a(f's_add_u32 m0, {sW1K}, {hx(base + q*4096)}')
        a(f'v_add_u32 {vtmp}, {q*4*49152 + p*1024}, {vsrc}')
        return a(f'global_load_lds_dwordx4 {vtmp}, {sWQKV}' + (' nt' if self.opt.get('nt', 0) & 2 else ''))

    def pattern_ones(self, PO):
        a = self.a
        a(f'''
        v_bfe_u32 {vA2}, {vLANE}, 2, 1
        v_bfe_u32 {vA3}, {vLANE}, 4, 1
        v_cmp_eq_u32 vcc, {vA2}, {vA3}
        v_mov_b32 {vA2}, {sONE2}
        v_cndmask_b32 v{PO}, 0, {vA2}, vcc
        v_cndmask_b32 v{PO+1}, 0, {vA2}, vcc
        v_cndmask_b32 v{PO+2}, 0, {vA2}, vcc
        v_cndmask_b32 v{PO+3}, 0, {vA2}, vcc
        ''')

    def do(self, o):
        if isinstance(o, str):
            self.a(o)
        elif o[0] == 'wait':
            self.a.wait(*o[1:])
        elif o[0] == 'call':
            o[1]()

    def build(self):
        a = self.a
        a.raw('; @launch grid=(256,1,1) block=(256,1,1) lds=163840')
        a.raw('.amdgcn_target "amdgcn-amd-amdhsa--gfx950"\n.text')
        a.raw(kernel_head(NAME))
        self.prologue()
        for l in range(2):
            if l == 0:
                self.p1a_l0()
            else:
                self.p1a_l1()
            self.p1b(l)
            self.attention(l)
            self.p2(l)
            self.p3(l)
            self.p4(l)
        assert not self.bgq
        self.finish()
        a.label('.EXIT')
        a('s_endpgm')
        for t in self.tail:
            a.raw(t)
        a.raw('.section .rodata,"a"')
        a.raw(kernel_desc(NAME, 512, 256, 102))
        return a.text()

    def prologue(self):
        a = self.a
        a(f'''
        s_cmp_ge_u32 s2, 256
        s_cbranch_scc1 .EXIT
        s_load_dwordx4 s[4:7], s[0:1], 0
        s_load_dwordx2 s[24:25], s[0:1], 80
        s_load_dwordx2 s[8:9], s[0:1], 16
        s_load_dwordx8 s[12:19], s[0:1], 32
        s_load_dwordx4 s[20:23], s[0:1], 64
        v_lshrrev_b32 v5, 6, v0
        v_and_b32 {vLANE}, 63, v0
        s_and_b32 {sT0}, s2, 7
        v_readfirstlane_b32 {sW}, v5
        s_lshr_b32 {sT1}, s2, 3
        s_lshr_b32 {sT2}, {sT1}, 4
        s_lshl_b32 {sT0}, {sT0}, 1
        s_add_u32 {sG}, {sT0}, {sT2}
        s_and_b32 {sM}, {sT1}, 15
        s_lshr_b32 {sRH}, {sM}, 3
        s_and_b32 {sCT}, {sM}, 7
        s_lshr_b32 {sTT}, {sW}, 1
        s_and_b32 {sFT}, {sW}, 1
        s_lshl_b32 {sW1K}, {sW}, 10
        s_lshl_b32 {sW8K}, {sW}, 13
        v_lshlrev_b32 {vL16}, 4, {vLANE}
        v_and_b32 {vT}, 31, {vLANE}
        v_lshrrev_b32 {vH}, 5, {vLANE}
        v_mov_b32 v0, 0
        ''')
        if self.prof:
            a(f's_memrealtime {sPT}\ns_waitcnt lgkmcnt(0)\nv_writelane_b32 v0, s54, 62')

    def prologue2(self):
        a = self.a
        a(f'''
        s_mov_b32 {sMODE}, 0
        s_mov_b32 {sLIM}, 40000
        s_mov_b32 {sONE2}, 0x3f803f80
        s_mov_b32 s40, 0
        s_mov_b32 s41, -1
        s_mov_b32 s42, 0xffff
        s_mov_b32 s43, 0xffff
        s_lshl_b32 {sGB}, {sG}, 21
        s_add_u32 {sGB}, {sGB}, {G0}
        s_getreg_b32 {sXCC}, hwreg(HW_REG_XCC_ID)
        s_and_b32 {sXCC}, {sXCC}, 7
        s_lshl_b32 {sTQ}, {sG}, 2
        s_lshl_b32 {sT1}, {sRH}, 1
        s_add_u32 {sTQ}, {sTQ}, {sT1}
        s_add_u32 {sTQ}, {sTQ}, {sTT}
        s_lshl_b32 {sPQ}, {sCT}, 1
        s_add_u32 {sPQ}, {sPQ}, {sFT}
        v_cndmask_b32 {vHZ}, 1.0, 0, {sHM}
        v_bfe_u32 {vA0}, {vLANE}, 2, 2
        v_lshl_add_u32 {vA0}, {vH}, 2, {vA0}
        v_lshlrev_b32 {vA0}, 6, {vA0}
        v_bfe_u32 {vA1}, {vLANE}, 4, 1
        v_lshl_add_u32 {vA0}, {vA1}, 5, {vA0}
        v_and_b32 {vA1}, 3, {vLANE}
        v_lshl_add_u32 {vTR0}, {vA1}, 3, {vA0}
        v_add_u32 {vTR1}, {A2}, {vTR0}
        v_mov_b32 v{XE}, 0
        v_mov_b32 v{XE+1}, 0
        v_mov_b32 v{XE+4}, 0
        v_mov_b32 v{XE+5}, 0
        v_lshlrev_b32 {vA0}, 2, {vH}
        v_sub_u32 {vA0}, {vT}, {vA0}
        s_lshl_b32 {sT0}, {sG}, 2
        s_sub_i32 {sT0}, 7, {sT0}
        s_sub_i32 {sIA}, {sT0}, {sTT}
        s_add_i32 {sIB}, {sT0}, {sTT}
        s_sub_i32 {sIB}, {sIB}, 3
        ''')
        for j in range(16):
            c = 8 * (j >> 2) + (j & 3)
            a(f'v_cmp_le_i32 s[{MASK0+2*j}:{MASK0+2*j+1}], {c}, {vA0}')

    def res_addr(self, v):
        a = self.a
        a(f'''
        s_lshl_b32 {sT0}, {sTQ}, 15
        s_lshl_b32 {sT1}, {sPQ}, 6
        s_add_u32 {sT0}, {sT0}, {sT1}
        v_lshlrev_b32 {v}, 10, {vT}
        v_lshl_add_u32 {v}, {vH}, 3, {v}
        v_add_u32 {v}, {sT0}, {v}
        ''')

    def p1a_l0(self):
        a = self.a
        accK, accV = ACC, ACC + 16
        WB = ACC + 32
        XT = 216
        PO = 224
        CS = 228
        XA = 240
        XR = 244
        WS_ = 'v248'
        vEPO = 'v249'
        vTM = 'v250'
        SM, SQ, ON = RES, RES + 4, 22
        vCT = vK0
        TS = X + 4*28
        AQ, AS = 32, 64
        MF4 = 'v_mfma_f32_4x4x4_16b_bf16'
        XCH = A1 + 2*4096
        a(f"""
        v_lshrrev_b32 {vA0}, 2, {vLANE}
        v_and_b32 {vA1}, 3, {vLANE}
        v_and_b32 {vA2}, 3, {vA0}
        v_bfe_u32 {vA3}, {vA0}, 2, 1
        v_lshl_add_u32 {vA2}, {vA3}, 3, {vA2}
        v_bfe_u32 {vA3}, {vA0}, 3, 1
        v_lshl_add_u32 {vA2}, {vA3}, 2, {vA2}
        s_movk_i32 {sT2}, 3072
        v_mul_u32_u24 {vA2}, {sT2}, {vA2}
        v_lshl_add_u32 {vA2}, {vA1}, 4, {vA2}
        s_mul_i32 {sT0}, {sW}, 49152
        s_lshl_b32 {sT1}, {sM}, 6
        s_add_u32 {sT0}, {sT0}, {sT1}
        v_add_u32 {WS_}, {sT0}, {vA2}
        s_lshl_b32 {sT0}, {sG}, 7
        s_lshl_b32 {sT1}, {sW}, 5
        s_add_u32 {sT0}, {sT0}, {sT1}
        s_lshl_b32 {sT0}, {sT0}, 10
        s_lshl_b32 {sRING}, {sW}, 14
        s_add_u32 {sRING}, {sRING}, {RING}
        v_lshrrev_b32 {vA0}, 3, {vLANE}
        v_and_b32 {vA1}, 7, {vLANE}
        v_lshrrev_b32 {vA2}, 1, {vA0}
        v_xor_b32 {vA1}, {vA1}, {vA2}
        v_lshlrev_b32 {vA0}, 10, {vA0}
        v_add_u32 {vA0}, {sT0}, {vA0}
        v_lshl_add_u32 v{XA}, {vA1}, 4, {vA0}
        v_xor_b32 {vA1}, 4, {vA1}
        v_lshl_add_u32 v{XA+1}, {vA1}, 4, {vA0}
        v_add_u32 v{XA+1}, 8192, v{XA+1}
        v_add_u32 v{XA+2}, 16384, v{XA}
        v_add_u32 v{XA+3}, 16384, v{XA+1}
        s_lshr_b32 {sT0}, s2, 3
        s_lshl_b32 {sT0}, {sT0}, 1
        s_lshl_b32 {sT1}, {sW}, 6
        s_add_u32 {sT0}, {sT0}, {sT1}
        v_bfe_u32 {vA3}, {vLANE}, 4, 1
        v_add_u32 {vA3}, {sT0}, {vA3}
        v_mul_u32_u24 {vA3}, {sT2}, {vA3}
        v_and_b32 {vA4}, 15, {vLANE}
        v_lshl_add_u32 v{TS+5}, {vA4}, 7, {vA3}
        v_add_u32 v{TS+6}, {256*3072}, v{TS+5}
        v_and_b32 {vA4}, 7, {vLANE}
        v_lshl_add_u32 {vA3}, {vA4}, 7, {vA3}
        v_bfe_u32 {vA5}, {vLANE}, 3, 1
        s_mov_b32 {sT2}, {256*3072}
        v_mad_u32_u24 v{TS+7}, {vA5}, {sT2}, {vA3}
        s_lshl_b32 {sT0}, {sG}, 17
        s_lshl_b32 {sT1}, {sM}, 13
        s_add_u32 {sT0}, {sT0}, {sT1}
        s_lshl_b32 {sT1}, {sW}, 7
        s_add_u32 {sT0}, {sT0}, {sT1}
        v_lshl_add_u32 {vA4}, {vA4}, 10, {sT0}
        v_lshl_add_u32 {vA4}, {vA5}, 9, {vA4}
        s_waitcnt lgkmcnt(0)
        """)
        self.stamp('start')
        cp = self.opt.get('cp', 1)
        gs = {}
        xr = {}
        cnt = {}
        cur = [-1]

        def xd(c, j):
            if c >= 4:
                a.wait(xr[c-4])
            a(f's_add_u32 m0, {sRING}, {hx((c % 4)*4096 + j*1024 - c*128)}')
            gs[c] = a(f'global_load_lds_dwordx4 v{XA+j}, {sX} offset:{c*128}')
            cnt[c] = cnt.get(c, 0) + 1

        def wd(c, p):
            gs[c-1] = self.wqkv_dma1(WS_, vTM, c, p)
            cnt[c-1] = cnt.get(c-1, 0) + 1
        ops = []
        if cp:
            ops.append(lambda: a(f'global_load_dword v252, {vA4}, {sX}\nglobal_load_dword v252, v{TS+5}, {sWQKV} offset:1024'))
        ops += [lambda: wd(0, 1), lambda: wd(0, 2)]
        for c in range(8):
            ops += [lambda c=c, j=j: xd(c, j) for j in range(4)]
            if c < 7:
                ops += [lambda c=c: wd(c+1, 1), lambda c=c: wd(c+1, 2)]
            if c == 0:
                ops.append(lambda: a(f'v_mov_b32 {vA0}, 0\nglobal_load_dword {vEPO}, {vA0}, {sWS} sc1'))
                if cp:
                    ops.append(lambda: a(f'global_load_dword v252, v{TS+6}, {sWQKV} offset:1024'))
            if c == self.opt.get('cq', 2) and cp:
                ops.append(lambda: a(f'global_load_dword v252, v{TS+7}, {sWQKV}'))
            if c == self.opt.get('np', 3) - 1:
                npro = len(ops)
        tjs = []
        for i in range(5):
            def td(i=i):
                assert cur[0] >= 14
                a(f's_add_u32 m0, {sW1K}, {(A0 + i*4096) if i < 3 else (A1 + (i-3)*4096)}')
                self.tj = a(f'global_load_lds_dwordx4 v{TS+i}, {(sW1, sW1, sW2, sW2, sWO)[i]}')
            tjs.append(td)
        qds = [lambda q=q: setattr(self, 'wq_last', self.wqkv_dma1(WS_, vTM, q, 0)) for q in range(8)]
        ops += (tjs + qds) if self.opt.get('tfirst', 0) else (qds + tjs)
        for i, o in enumerate(ops[:npro]):
            o()
            if i == 9:
                self.prologue2()
        self.bgq = ops[npro:]
        a(f"""
        v_lshrrev_b32 {vA0}, 2, {vLANE}
        v_and_b32 {vA1}, 3, {vLANE}
        s_cmp_eq_u32 {sW}, 3
        s_cselect_b32 {sT2}, 1, 3
        v_and_b32 {vA2}, {sT2}, {vA1}
        s_movk_i32 {sT3}, 3584
        v_mul_u32_u24 {vA3}, {sT3}, {vA0}
        v_lshl_add_u32 {vA3}, {vA2}, 4, {vA3}
        s_mul_i32 {sT0}, {sG}, {32*3584}
        s_mul_i32 {sT1}, {sM}, 224
        s_add_u32 {sT0}, {sT0}, {sT1}
        s_lshl_b32 {sT1}, {sW}, 6
        s_add_u32 {sT0}, {sT0}, {sT1}
        v_add_u32 v{TS}, {sT0}, {vA3}
        v_lshlrev_b32 {vA4}, 10, {vA0}
        v_add_u32 v{TS+1}, {16*3584}, v{TS}
        v_lshl_add_u32 {vA4}, {vA1}, 4, {vA4}
        s_lshl_b32 {sT0}, {sCT}, 7
        s_lshl_b32 {sT1}, {sRH}, 6
        s_add_u32 {sT0}, {sT0}, {sT1}
        v_add_u32 {vA4}, {sT0}, {vA4}
        s_lshl_b32 {sT2}, {sW}, 1
        s_min_u32 {sT2}, {sT2}, 5
        s_mul_i32 {sT3}, {sG}, 7
        s_add_u32 {sT4}, {sT2}, {sT3}
        s_lshl_b32 {sT3}, {sT4}, 14
        v_add_u32 v{TS+2}, {sT3}, {vA4}
        v_add_u32 v{TS+3}, 16384, v{TS+2}
        s_lshl_b32 {sT5}, {sG}, 1
        s_add_u32 {sT5}, {sT5}, {sFT}
        s_lshl_b32 {sT3}, {sT5}, 14
        v_add_u32 v{TS+4}, {sT3}, {vA4}
        """)
        a(f"""
        v_and_b32 {vA1}, 15, {vLANE}
        v_lshl_add_u32 {vA1}, {vH}, 4, {vA1}
        v_lshlrev_b32 {vA1}, 4, {vA1}
        s_cmp_eq_u32 {sW}, 3
        s_cselect_b64 vcc, -1, 0
        s_cselect_b32 {sT2}, 10, 11
        v_cndmask_b32 {vA1}, {vL16}, {vA1}, vcc
        s_mul_i32 {sT0}, {sM}, 0x1C000
        s_lshl_b32 {sT1}, {sG}, {sT2}
        s_add_u32 {sT0}, {sT0}, {sT1}
        s_lshl_b32 {sT1}, {sW}, 15
        s_add_u32 {sT0}, {sT0}, {sT1}
        s_add_u32 {sT0}, {sT0}, {W1T}
        v_add_u32 {vBG0}, {sT0}, {vA1}
        s_sub_u32 {sT2}, {sT2}, 1
        s_lshl_b32 {sT2}, 1, {sT2}
        v_add_u32 v251, {sT2}, {vBG0}
        s_mul_i32 {sT0}, {sCT}, 0x38000
        s_lshl_b32 {sT1}, {sT4}, 11
        s_add_u32 {sT0}, {sT0}, {sT1}
        s_lshl_b32 {sT2}, {sRH}, 10
        s_add_u32 {sT0}, {sT0}, {sT2}
        s_add_u32 {sT0}, {sT0}, {W2T}
        v_add_u32 {vBG1}, {sT0}, {vL16}
        s_lshl_b32 {sT0}, {sCT}, 16
        s_lshl_b32 {sT1}, {sT5}, 11
        s_add_u32 {sT0}, {sT0}, {sT1}
        s_add_u32 {sT0}, {sT0}, {sT2}
        s_add_u32 {sT0}, {sT0}, {WOT}
        v_add_u32 {vBG2}, {sT0}, {vL16}
        """)
        a(f"""
        v_bfe_u32 {vA0}, {vT}, 1, 3
        v_lshlrev_b32 {vA1}, 7, {vT}
        v_add_u32 {vA1}, {sRING}, {vA1}
        """)
        for sp in range(4):
            a(f"""
            v_add_u32 {vA2}, {2*sp}, {vH}
            v_xor_b32 {vA2}, {vA2}, {vA0}
            v_lshl_add_u32 v{XR+sp}, {vA2}, 4, {vA1}
            """)
        self.pattern_ones(PO)
        a(f"""
        v_mov_b32 v{ON}, {sONE2}
        v_mov_b32 v{ON+1}, {sONE2}
        v_add_u32 {vCT}, {sW1K}, {vTR0}
        v_add_u32 {vK1}, {sW1K}, {vTR1}
        v_lshlrev_b32 {vA1}, 3, {vLANE}
        s_lshl_b32 {sT0}, {sW}, 9
        v_add_u32 {vA0}, {sT0}, {vA1}
        v_accvgpr_write_b32 a{AEXT+9}, 0
        v_accvgpr_write_b32 a{AEXT+11}, 0
        v_accvgpr_write_b32 a{AEXT+13}, 0
        v_accvgpr_write_b32 a{AEXT+14}, 0
        v_accvgpr_write_b32 a{AEXT+15}, 0
        """)
        self.stamp('issued')
        sh = {}

        def xread(c):
            for sp in range(4):
                xr[c] = a(f'ds_read_b128 {vr(X+4*(4*c+sp),4)}, v{XR+sp} offset:{(c%4)*4096}')

        def shread(c):
            b = AS + 8*(c % 2)
            for p in range(2):
                a(f'ds_read_b64_tr_b16 {ar(b+4*p,2)}, {vCT} offset:{(A0, A1)[p] + c*4096}')
                sh[c] = a(f'ds_read_b64_tr_b16 {ar(b+4*p+2,2)}, {vCT} offset:{(A0, A1)[p] + c*4096 + 512}')

        def shmm(c, p):
            a.wait(sh[c])
            a(f'{MF16} {vr(CS+4*p,4)}, {vr(PO,4)}, {ar(AS+8*(c%2)+4*p,4)}, {"0" if c == 0 else vr(CS+4*p,4)}')

        def stat(f, h):
            a.wait(xr[f // 4])
            z = f == 0 and h == 0
            x = vr(X+4*f+2*h, 2)
            a(f'{MF4} {vr(SQ,4)}, {x}, {x}, {"0" if z else vr(SQ,4)}')
            a(f'{MF4} {vr(SM,4)}, {vr(ON,2)}, {x}, {"0" if z else vr(SM,4)}')
        ev = {}

        def at(s, slot, f):
            ev.setdefault((s, slot), []).append(f)

        def arrive(c):
            if self.opt.get('fine'):
                self.stamp(f'e{c}')
            assert cnt[c] == (6 if c < 7 else 4)
            a.wait(gs[c])
            if self.opt.get('fine'):
                self.stamp(f'b{c}')
            xread(c)
            if c < 7:
                shread(c+1)
        for c in range(1, 8):
            at(4*c-3, 1, lambda c=c: arrive(c))
            at(4*c-3, 3, lambda: a('s_barrier'))
            if c < 7:
                at(4*c-2, 2, lambda c=c: shmm(c+1, 0))
                at(4*c-1, 0, lambda c=c: shmm(c+1, 1))
        at(0, 0, lambda: shmm(1, 0))
        at(0, 2, lambda: shmm(1, 1))

        def xw():
            a(f'v_mov_b32 v{CS+1}, v{CS+4}')
            self.xws = a(f'ds_write_b64 {vA0}, {vr(CS,2)} offset:{XCH}')
        at(24, 1, xw)
        ev[(25, 3)].insert(0, lambda: a.wait(self.xws))

        def xrd():
            for i in range(4):
                self.xrs = a(f'ds_read_b64 {vr(XT+2*i,2)}, {vA1} offset:{XCH + i*512}')
        at(25, 3, xrd)

        def xsum():
            a.wait(self.xrs)
            for i in range(1, 4):
                a(f'v_add_f32 v{XT}, v{XT}, v{XT+2*i}\nv_add_f32 v{XT+1}, v{XT+1}, v{XT+2*i+1}')
        at(27, 0, xsum)

        def extw(p):
            self.ext_w(f'v{XT+p}', vA2, XT+2)
            a(f'v_accvgpr_write_b32 a{AEXT+8+2*p}, {vA2}')
        at(27, 2, lambda: extw(0))
        at(28, 0, lambda: extw(1))
        qs = {}

        def qread(q):
            a.wait(self.wq_last)
            a(f'ds_read_b64_tr_b16 {ar(AQ+4*q,2)}, {vK1} offset:{q*4096}')
            qs[q] = a(f'ds_read_b64_tr_b16 {ar(AQ+4*q+2,2)}, {vK1} offset:{q*4096+512}')

        def qmm(q):
            a.wait(qs[q])
            a(f'{MF16} {vr(CS+8,4)}, {vr(PO,4)}, {ar(AQ+4*q,4)}, {"0" if q == 0 else vr(CS+8,4)}')
        for q in range(8):
            at(27 + q // 4, q % 4, lambda q=q: qread(q))
            at(30 + q // 4, (1, 1, 3, 3)[q % 4], lambda q=q: qmm(q))
        so = [f's_mov_b32 vcc_lo, 0x22222222\ns_mov_b32 vcc_hi, 0x22222222\nv_cndmask_b32 v{SM+1}, v{SQ}, v{SQ+1}, vcc',
              f's_mov_b32 vcc_lo, 0x44444444\ns_mov_b32 vcc_hi, 0x44444444\nv_cndmask_b32 v{SM+1}, v{SM+1}, v{SQ+2}, vcc',
              f's_mov_b32 vcc_lo, 0x88888888\ns_mov_b32 vcc_hi, 0x88888888\nv_cndmask_b32 v{SM+1}, v{SM+1}, v{SQ+3}, vcc']
        so += self.stats_ops(SM, False, summed=True)
        for k, sl in enumerate([(30, 1), (30, 2), (30, 3), (31, 0), (31, 1), (31, 2)]):
            for o in so[4*k:4*k+4]:
                at(sl[0], sl[1], lambda o=o: a(o))
        assert len(so) <= 24
        at(4, 0, lambda: a(f'v_readfirstlane_b32 {sEP}, {vEPO}\ns_add_u32 {sEP}, {sEP}, 0x9E3779B9'))

        def slot(s, k):
            cur[0] = s
            for f in ev.get((s, k), []):
                f()
            if k % 2:
                self.bg(1)
        a.wait(gs[0])
        self.stamp('first')
        xread(0)
        shread(0)
        shread(1)
        a('s_barrier')
        wl = {}
        for s in range(2):
            wl[s] = (self.trw(WB+8*s, s, 1), self.trw(WB+8*s+4, s, 2))
        for f in range(2):
            stat(f, 0)
            shmm(0, f)
            stat(f, 1)
        for s in range(32):
            b = WB + 8*(s % 3)
            b2 = WB + 8*((s+2) % 3)
            a.wait(xr[s // 4], wl[s][0])
            a(f'{MF32} {vr(accK,16)}, {vr(b,4)}, {vr(X+4*s,4)}, {"0" if s == 0 else vr(accK,16)}')
            if s + 2 < 32:
                w0 = self.trw(b2, s+2, 1)
            slot(s, 0)
            if s + 2 < 32:
                stat(s+2, 0)
            slot(s, 1)
            a.wait(wl[s][1])
            a(f'{MF32} {vr(accV,16)}, {vr(X+4*s,4)}, {vr(b+4,4)}, {"0" if s == 0 else vr(accV,16)}')
            if s + 2 < 32:
                wl[s+2] = (w0, self.trw(b2+4, s+2, 2))
            slot(s, 2)
            if s + 2 < 32:
                stat(s+2, 1)
            slot(s, 3)
            if s == 24:
                assert not self.bgq
        self.stamp('kv')
        a(f'v_lshrrev_b32 {vA0}, 1, {vA0}')
        a(f'ds_write_b32 {vA0}, v{CS+8} offset:{XCH+2048}')
        a('s_waitcnt lgkmcnt(0)')
        a('s_barrier')

    def res_load(self):
        a = self.a
        self.res_addr(vA0)
        for i in range(4):
            self.rs = a(f'global_load_dwordx2 {vr(RES+2*i,2)}, {vA0}, {sX} offset:{16*i}')

    def xaddr(self, inst):
        a = self.a
        a(f'''
        s_lshl_b32 {sT0}, {sG}, 2
        s_add_u32 {sT0}, {sT0}, {sW}
        s_lshl_b32 {sT1}, {sT0}, 7
        s_add_u32 {sT1}, {sT1}, {F_X + inst*0x2000}
        v_and_b32 {vA3}, 15, {vLANE}
        v_lshl_add_u32 {vA3}, {vA3}, 2, {sT1}
        s_lshl_b32 {sT0}, {sT0}, 12
        s_add_u32 {sT0}, {sT0}, {ST + inst*self.ss}
        v_lshlrev_b32 {vA2}, 3, {vT}
        v_lshl_add_u32 {vA2}, {vH}, 11, {vA2}
        v_add_u32 {vA2}, {sT0}, {vA2}
        s_lshl_b32 {sT1}, {sW}, 15
        s_add_u32 {sT2}, {sGB}, {sT1}
        s_add_u32 {sT2}, {sT2}, {XF + self.xo[inst] + 4096}
        v_add_u32 {vA1}, {sT2}, {vL16}
        ''')

    def xload(self, inst, statdst):
        a = self.a
        self.poll_loop(vA3)
        self.stamp('xflag')
        seqs = []
        sl = None
        for s in range(32):
            if s % 8 == 0 and s > 0:
                a(f'v_add_u32 {vA1}, 8192, {vA1}')
            seqs.append(a(f'global_load_dwordx4 {vr(X+4*s,4)}, {vA1}, {sWS} offset:{(s%8)*1024-4096} sc1'))
            if s == 7:
                sl = self.stats_load(inst, statdst)
        return sl, seqs

    def p1a_l1(self):
        a = self.a
        WB = ACC + 48
        SD = 232
        accK, accV = ACC, ACC + 16
        wl = {}
        for s in range(2):
            b = WB + 8*(s % 3)
            wl[s] = (self.trw(b, s, 1), self.trw(b+4, s, 2))
        sl, xs = self.xload(2, SD)
        so = self.stats_ops(SD, False)
        for s in range(32):
            b = WB + 8*(s % 3)
            a.wait(xs[s], wl[s][1])
            ck = '0' if s == 0 else vr(accK, 16)
            cv = '0' if s == 0 else vr(accV, 16)
            a(f'{MF32} {vr(accK,16)}, {vr(b,4)}, {vr(X+4*s,4)}, {ck}')
            if s + 2 < 32:
                b2 = WB + 8*((s+2) % 3)
                w0 = self.trw(b2, s+2, 1)
            if s >= 8:
                for o in so[:2]:
                    a(o)
                so = so[2:]
            a(f'{MF32} {vr(accV,16)}, {vr(X+4*s,4)}, {vr(b+4,4)}, {cv}')
            if s + 2 < 32:
                wl[s+2] = (w0, self.trw(b2+4, s+2, 2))
        assert not so
        self.stamp('kv')
        a('s_barrier')

    def w1_bg(self, tiles):
        a = self.a

        def setup():
            a(f'''
            s_mul_i32 {sT0}, {sM}, 0x1C000
            s_add_u32 {sT0}, {sT0}, {W1T}
            v_add_u32 {vBG0}, {sT0}, {vL16}
            ''')

        self.bgq.append(setup)
        for c in tiles:
            for i0 in range(0, 8 if c < 3 else 4, 4):
                for i in range(i0, i0 + 4):
                    def op(c=c, i=i, i0=i0):
                        if c < 3:
                            a(f's_add_u32 m0, {sW8K}, {c*32768 + i0*1024}')
                        else:
                            a(f's_lshl_b32 {sT0}, {sW}, 12\ns_add_u32 m0, {sT0}, {A3}')
                        if i == i0:
                            a(f'v_add_u32 {vBG1}, m0, {vBG0}')
                        self.w1seq = a(f'global_load_lds_dwordx4 {vBG1}, {sWS} offset:{(i%4)*1024}')
                    self.bgq.append(op)

    def wreg_bg(self, base, ctstride, wstride, n, dst, lo=0):
        a = self.a

        def setup():
            a(f'''
            s_mul_i32 {sT0}, {sCT}, {ctstride}
            s_mul_i32 {sT1}, {sW}, {wstride}
            s_add_u32 {sT0}, {sT0}, {sT1}
            s_add_u32 {sT0}, {sT0}, {base + 4096 + lo*2048}
            s_lshl_b32 {sT1}, {sFT}, 10
            s_add_u32 {sT2}, {sT0}, {sT1}
            s_xor_b32 {sT1}, {sT1}, 1024
            s_add_u32 {sT3}, {sT0}, {sT1}
            v_add_u32 {vBG1}, {sT2}, {vL16}
            v_add_u32 {vBG2}, {sT3}, {vL16}
            ''')
        self.bgq.append(setup)
        for i in range(lo, n):
            for j in range(2):
                def op(i=i, j=j):
                    v = (vBG1, vBG2)[j]
                    if (i - lo) % 4 == 0 and i > lo:
                        a(f'v_add_u32 {v}, 8192, {v}')
                    self.wrseq = a(f'global_load_dwordx4 {dst(i, j)}, {v}, {sWS} offset:{((i-lo)%4)*2048-4096}' + (' nt' if self.opt.get('nt', 0) & 1 and base == W2T else ''))
                self.bgq.append(op)

    def p1b(self, l):
        a = self.a
        accK, accV, accQ = ACC, ACC + 16, ACC + 32
        WB = ACC + 48
        CS = 220
        RR = 228
        XCH = A1 + 2*4096
        a(f'{MF32} {vr(accK,16)}, {ar(AEXT+8,4)}, {vr(XE+2,4)}, {vr(accK,16)}')
        a(f'{MF32} {vr(accV,16)}, {vr(XE,4)}, {ar(AEXT+8,4)}, {vr(accV,16)}')
        a(f"""
        s_lshl_b32 {sT0}, {sW}, 7
        s_add_u32 {sT0}, {sT0}, {RB}
        v_lshl_add_u32 {vA0}, {vT}, 2, {sT0}
        v_lshl_add_u32 {vA1}, {vH}, 4, {sT0}
        ds_write_b32 {vA0}, {vR}
        """)
        wl = {}
        for s in range(2):
            wl[s] = self.trw(WB + 4*(s % 3), s, 0)
        for i in range(4):
            rr = a(f'ds_read_b128 {vr(RR+4*i,4)}, {vA1} offset:{32*i}')
        if l == 0:
            a(f'v_lshlrev_b32 {vA0}, 2, {vLANE}')
            for i in range(4):
                cq = a(f'ds_read_b32 v{CS+i}, {vA0} offset:{XCH+2048+256*i}')
        a(f"""
        s_lshl_b32 {sT1}, {sM}, 14
        s_add_u32 {sT0}, {sGB}, {sT1}
        s_lshl_b32 {sT1}, {sW}, 12
        s_add_u32 {sT0}, {sT0}, {sT1}
        s_add_u32 {sT0}, {sT0}, {KV + l*0x40000}
        v_add_u32 {vA1}, {sT0}, {vL16}
        s_add_u32 {sT1}, {sT1}, {LB + 8*4096}
        v_add_u32 {vA2}, {sT1}, {vL16}
        """)

        def pub(i):
            self.kvst = a(f'global_store_dwordx4 {vA1}, {vr(accK+4*i,4)}, {sWS} offset:{i*1024} sc1')

        def publ(i):
            a(f'ds_write_b128 {vA2}, {vr(accK+4*i,4)} offset:{i*1024}')
        ep = []
        for hh in range(2):
            for j in range(8*hh, 8*hh+8):
                ep.append(f'v_mul_f32 v{accK+j}, v{accK+j}, {vR}')
            for j in range(4*hh, 4*hh+4):
                ep.append(f'v_cvt_pk_bf16_f32 v{accK+j}, v{accK+2*j}, v{accK+2*j+1}')
            ep.append(('call', lambda i=hh: pub(i)))
        ep.append(('wait', rr))
        for hh in range(2):
            for j in range(8*hh, 8*hh+8):
                ep.append(f'v_mul_f32 v{accV+j}, v{accV+j}, v{RR+j}')
            for j in range(4*hh, 4*hh+4):
                ep.append(f'v_cvt_pk_bf16_f32 v{accK+8+j}, v{accV+2*j}, v{accV+2*j+1}')
            ep.append(('call', lambda i=hh: pub(2+i)))
        for i in range(4):
            ep.append(('call', lambda i=i: publ(i)))
        hooks = {}
        if l == 0:
            ep.append(('wait', cq))
            ep += [f'v_add_f32 v{CS}, v{CS}, v{CS+1}', f'v_add_f32 v{CS+2}, v{CS+2}, v{CS+3}', f'v_add_f32 v{CS}, v{CS}, v{CS+2}']
            ep.append(('call', lambda: self.ext_w(f'v{CS}', f'v{CS+1}', CS+2)))
            ep.append(f'v_accvgpr_write_b32 a{AEXT+12}, v{CS+1}')
            TQ = self.opt.get('tq', 14)

            def tread():
                a.wait(self.tj)
                for i in range(5):
                    off = (A0 + i*4096) if i < 3 else (A1 + (i-3)*4096)
                    a(f'ds_read_b64_tr_b16 {ar(4*i,2)}, {vK0} offset:{off}')
                    self.tl = a(f'ds_read_b64_tr_b16 {ar(4*i+2,2)}, {vK0} offset:{off+512}')

            def tstore():
                a.wait(self.tl)
                a(f"""
                global_store_dwordx4 {vBG0}, {ar(0,4)}, {sWS} sc1
                global_store_dwordx4 v251, {ar(4,4)}, {sWS} sc1
                global_store_dwordx4 {vBG1}, {ar(8,4)}, {sWS} sc1
                global_store_dwordx4 {vBG1}, {ar(12,4)}, {sWS} offset:2048 sc1
                """)
                self.tst = a(f'global_store_dwordx4 {vBG2}, {ar(16,4)}, {sWS} sc1')
            hooks[TQ] = tread
            hooks[TQ+4] = tstore

        def kvflag():
            a(f"""
            s_lshl_b32 {sT0}, {sG}, 4
            s_add_u32 {sT0}, {sT0}, {sM}
            s_lshl_b32 {sT0}, {sT0}, 2
            s_add_u32 {sT0}, {sT0}, {sW}
            s_lshl_b32 {sT0}, {sT0}, 7
            s_add_u32 {sT0}, {sT0}, {F_KV + l*0x20000}
            v_mov_b32 {vA3}, {sT0}
            """)
            a.wait(self.kvst)
            self.flag_store(vA3, slow=True)
        per = 6
        for s in range(32):
            b = WB + 4*(s % 3)
            a.wait(wl[s])
            a(f'{MF32} {vr(accQ,16)}, {vr(b,4)}, {vr(X+4*s,4)}, {"0" if s == 0 else vr(accQ,16)}')
            if s + 2 < 32:
                wl[s+2] = self.trw(WB + 4*((s+2) % 3), s+2, 0)
            if s >= 1:
                for o in ep[:per]:
                    self.do(o)
                ep = ep[per:]
            if s in hooks:
                hooks[s]()
        assert not ep
        a(f'{MF32} {vr(accQ,16)}, {ar(AEXT+12,4)}, {vr(XE+2,4)}, {vr(accQ,16)}')
        a(f'v_mul_f32 {vA1}, {f2h(0.25*math.log2(math.e))}, {vR}')
        a(f's_lshl_b32 {sT0}, {sW}, 11\ns_add_u32 {sT0}, {sT0}, {QX}\nv_add_u32 {vA2}, {sT0}, {vL16}')
        if self.opt.get('kf', 0) == 0:
            kvflag()
        for hh in range(2):
            for j in range(8*hh, 8*hh+8):
                a(f'v_mul_f32 v{accQ+j}, v{accQ+j}, {vA1}')
            for j in range(4*hh, 4*hh+4):
                a(f'v_cvt_pk_bf16_f32 v{accV+j}, v{accQ+2*j}, v{accQ+2*j+1}')
            a(f'ds_write_b128 {vA2}, {vr(accV+4*hh,4)} offset:{hh*1024}')
        if self.opt.get('kf', 0) == 1:
            kvflag()
        self.stamp('q')

    def wt_flag(self):
        a = self.a
        a(f"""
        s_lshl_b32 {sT0}, {sM}, 4
        s_add_u32 {sT0}, {sT0}, {sG}
        s_lshl_b32 {sT0}, {sT0}, 7
        s_lshl_b32 {sT1}, {sW}, 2
        s_add_u32 {sT0}, {sT0}, {sT1}
        s_add_u32 {sT0}, {sT0}, {F_WT}
        v_mov_b32 v230, {sT0}
        s_and_b32 {sT0}, {sEP}, -8
        s_or_b32 {sT0}, {sT0}, {sXCC}
        """)
        a.wait(self.tst)
        self.flag_store('v230', slow=True, val=sT0)

    def wt_issue(self):
        a = self.a
        a(f"""
        s_lshl_b32 {sT0}, {sCT}, 11
        s_lshl_b32 {sT1}, {sG}, 7
        v_and_b32 v231, 15, {vLANE}
        v_lshlrev_b32 v230, 7, v231
        v_bfe_u32 v232, {vLANE}, 4, 1
        v_lshl_add_u32 v230, v232, 14, v230
        v_add_u32 v230, {sT0}, v230
        v_lshl_add_u32 v231, v231, 11, {sT1}
        v_cndmask_b32 v230, v230, v231, {sHM}
        v_add_u32 v230, {F_WT}, v230
        """)
        self.wtp = a(f'global_load_dwordx4 v[232:235], v230, {sWS} sc1')

    def wt_check(self):
        a = self.a
        ok = a.newlabel('wok')
        lp = a.newlabel('wlp')
        a.wait(self.wtp)
        a(f's_mov_b32 {sCNT}, 0')
        a.label(lp)
        a(f"""
        v_xor_b32 v231, {sEP}, v232
        v_xor_b32 v233, {sEP}, v233
        v_xor_b32 v234, {sEP}, v234
        v_xor_b32 v235, {sEP}, v235
        v_or3_b32 v231, v231, v233, v234
        v_or_b32 v231, v231, v235
        v_cmp_le_u32 vcc, 8, v231
        v_and_b32 v232, 7, v232
        s_add_u32 {sCNT}, {sCNT}, 1
        s_cmp_eq_u64 vcc, 0
        s_cbranch_scc1 {ok}
        """)
        sv = (a.vm_done, a.lg_done)
        a(f'global_load_dwordx4 v[232:235], v230, {sWS} sc1', count=False)
        a(f"""
        s_waitcnt vmcnt(0)
        s_cmp_lt_u32 {sCNT}, {sLIM}
        s_cbranch_scc1 {lp}
        s_mov_b32 {sLIM}, 1
        """)
        a.vm_done, a.lg_done = sv
        a.label(ok)
        a(f"""
        v_cmp_ne_u32 vcc, {sXCC}, v232
        s_nop 0
        s_cmp_eq_u32 vcc_hi, 0
        s_cselect_b32 {sMODE}, 1, 0
        """)

    def halo_addr(self, l):
        a = self.a
        a(f'''
        s_add_u32 {sT2}, {sG}, {sTT}
        s_max_u32 {sT2}, {sT2}, 2
        s_sub_u32 {sT2}, {sT2}, 2
        s_lshl_b32 {sT0}, {sT2}, 4
        s_add_u32 {sT0}, {sT0}, {sM}
        s_lshl_b32 {sT0}, {sT0}, 2
        s_lshl_b32 {sT1}, {sFT}, 1
        s_add_u32 {sT0}, {sT0}, {sT1}
        s_lshl_b32 {sT0}, {sT0}, 7
        s_add_u32 {sT0}, {sT0}, {F_KV + l*0x20000}
        v_and_b32 {vA3}, 1, {vLANE}
        v_lshl_add_u32 {vA3}, {vA3}, 7, {sT0}
        s_lshl_b32 {sT0}, {sT2}, 21
        s_lshl_b32 {sT1}, {sM}, 14
        s_add_u32 {sT0}, {sT0}, {sT1}
        s_lshl_b32 {sT1}, {sFT}, 13
        s_add_u32 {sT0}, {sT0}, {sT1}
        s_add_u32 {sT0}, {sT0}, {G0 + KV + l*0x40000}
        v_add_u32 {vA1}, {sT0}, {vL16}
        v_add_u32 {vA2}, 4096, {vA1}
        ''')

    def halo_dma(self):
        a = self.a
        a(f's_add_u32 m0, {sW8K}, {LB}\ns_nop 0')
        for i in range(4):
            a(f'global_load_lds_dwordx4 {vA1}, {sWS} offset:{i*1024} sc1')
        a(f's_add_u32 m0, {sW8K}, {LB+4096}\ns_nop 0')
        for i in range(4):
            seq = a(f'global_load_lds_dwordx4 {vA2}, {sWS} offset:{i*1024} sc1')
        return seq

    def prefetch_out(self):
        a = self.a
        D = vr(96, 4)
        q = []

        def s1():
            a(f'''
            s_lshl_b32 {sT1}, {sM}, 11
            s_add_u32 {sT0}, {sGB}, {sT1}
            s_lshl_b32 {sT1}, {sW}, 15
            s_add_u32 {sT0}, {sT0}, {sT1}
            s_add_u32 {sT0}, {sT0}, {OF}
            v_add_u32 v251, {sT0}, {vL16}
            s_and_b32 {sT1}, {sTQ}, 3
            s_lshl_b32 {sT1}, {sT1}, 15
            s_add_u32 {sT0}, {sGB}, {sT1}
            s_lshl_b32 {sT1}, {sPQ}, 11
            s_add_u32 {sT0}, {sT0}, {sT1}
            s_add_u32 {sT0}, {sT0}, {XF}
            v_add_u32 v252, {sT0}, {vL16}
            global_store_dwordx4 v251, {D}, {sWS} sc1
            global_store_dwordx4 v251, {D}, {sWS} offset:1024 sc1
            ''')

        def s2():
            a(f'''
            global_store_dwordx4 v252, {D}, {sWS} sc1
            global_store_dwordx4 v252, {D}, {sWS} offset:1024 sc1
            s_lshl_b32 {sT0}, {sTQ}, 12
            s_lshl_b32 {sT1}, {sPQ}, 8
            s_add_u32 {sT0}, {sT0}, {sT1}
            s_add_u32 {sT0}, {sT0}, {ST}
            v_lshl_add_u32 v251, {vLANE}, 2, {sT0}
            global_store_dword v251, v251, {sWS} sc1
            s_mul_i32 {sT1}, {sW}, {112*1024}
            s_add_u32 {sT0}, {sGB}, {sT1}
            s_mul_i32 {sT1}, {sM}, {7*1024}
            s_add_u32 {sT0}, {sT0}, {sT1}
            s_add_u32 {sT0}, {sT0}, {HF+4096}
            v_add_u32 v250, {sT0}, {vL16}
            ''')
        q += [s1, s2]
        for i in range(7):
            q.append(lambda i=i: a(f'global_store_dwordx4 v250, {D}, {sWS} offset:{i*1024-4096} sc1'))
        return q

    def attention(self, l):
        a = self.a
        Q = {'a': 96, 'b': 100}
        NM = {'a': 104, 'b': 120}
        S = [136, 152]
        O = {'a': 168, 'b': 184}
        KB = [200, 204, 208]
        VB = 212
        MX = {'a': 'v220', 'b': 'v221'}
        DL = {'a': 'v222', 'b': 'v223'}
        vBIG = 'v224'
        vK = {'a': 'v225', 'b': 'v226'}
        vV = {'a': 'v227', 'b': 'v228'}
        m = lambda j: f's[{MASK0+2*j}:{MASK0+2*j+1}]'
        self.halo_addr(l)
        hp = self.poll_issue(vA3)
        a(f'''
        s_lshl_b32 {sT0}, {sTT}, 12
        s_lshl_b32 {sT1}, {sFT}, 10
        s_add_u32 {sT2}, {sT0}, {sT1}
        s_add_u32 {sT2}, {sT2}, {LB}
        v_add_u32 {vK['a']}, {sT2}, {vL16}
        s_sub_u32 {sT3}, {sT1}, {sT0}
        s_add_u32 {sT3}, {sT3}, {LB + 3*4096}
        v_add_u32 {vK['b']}, {sT3}, {vL16}
        s_lshl_b32 {sT1}, {sFT}, 8
        s_add_u32 {sT2}, {sT0}, {sT1}
        s_add_u32 {sT2}, {sT2}, {LB + 2048}
        v_add_u32 {vV['a']}, {sT2}, {vL16}
        s_sub_u32 {sT3}, {sT1}, {sT0}
        s_add_u32 {sT3}, {sT3}, {LB + 3*4096 + 2048}
        v_add_u32 {vV['b']}, {sT3}, {vL16}
        s_lshl_b32 {sT0}, {sTT}, 11
        s_lshl_b32 {sT1}, {sFT}, 10
        s_add_u32 {sT2}, {sT0}, {sT1}
        s_add_u32 {sT2}, {sT2}, {QX}
        v_add_u32 {vA0}, {sT2}, {vL16}
        s_sub_u32 {sT3}, {sT1}, {sT0}
        s_add_u32 {sT3}, {sT3}, {QX + 3*2048}
        v_add_u32 v229, {sT3}, {vL16}
        v_mov_b32 {vBIG}, {hex(BIGNEG)}
        ''')
        for j in range(16):
            a(f'v_cndmask_b32 v{NM["a"]+j}, {vBIG}, 0, {m(j)}')
        for j in range(8):
            a(f'v_mov_b32 v{VB+j}, {sONE2}')
        a.wait_all(vm=False)
        a('s_barrier')
        a(f'ds_read_b128 {vr(Q["a"],4)}, {vA0}')
        qs = a(f'ds_read_b128 {vr(Q["b"],4)}, v229')

        def kread(st, buf):
            return a(f'ds_read_b128 {vr(buf,4)}, {vK[st[0]]} offset:{st[1]*4096}')

        def vread(st):
            a(f's_mov_b64 exec, {sLO16}')
            a(f'ds_read_b128 {vr(VB,4)}, {vV[st[0]]} offset:{st[1]*4096}')
            r = a(f'ds_read_b128 {vr(VB+4,4)}, {vV[st[0]]} offset:{st[1]*4096+1024}')
            a('s_mov_b64 exec, -1')
            return r

        def fix(st):
            s, i = st
            if (s == 'a' and i in (7, 6, 3, 2)) or (s == 'b' and i in (5, 4, 1, 0)):
                f = a.newlabel('fix')
                r = a.newlabel('fixr')
                a(f's_cmp_eq_i32 {sIA if s == "a" else sIB}, {i}\ns_cbranch_scc1 {f}')
                a.label(r)
                self.tail.append(f'{f}:\n    s_nop 15\n' + ''.join(f'    v_mov_b32 v{NM[s]+j}, {vBIG}\n' for j in range(16)) + f'    s_nop 3\n    s_branch {r}')

        def qk(st, sb, kb, C):
            a(f'{MF32} {vr(sb,16)}, {vr(kb,4)}, {vr(Q[st[0]],4)}, {C}')

        def pass1(stages, local, hook=None):
            n = len(stages)
            ks = {}
            for k in range(min(3, n)):
                ks[k] = kread(stages[k], KB[k % 3])
            acc = MX if local else DL
            first = {'a': local, 'b': local}

            def issue(k):
                st = stages[k]
                sb = S[k % 2]
                if local:
                    C = vr(NM['a'], 16) if st[1] == 8 else '0'
                else:
                    fix(st)
                    C = vr(NM[st[0]], 16)
                    if st[1] == 0:
                        for j in range(16):
                            a(f'v_cndmask_b32 v{sb+j}, v{NM[st[0]]+j}, {vBIG}, {m(j)}')
                        C = vr(sb, 16)
                a.wait(ks[k])
                qk(st, sb, KB[k % 3], C)
                if k + 3 < n:
                    ks[k+3] = kread(stages[k+3], KB[k % 3])
            issue(0)
            for k in range(n):
                if k + 1 < n:
                    issue(k + 1)
                if hook:
                    hook(k)
                s = S[k % 2]
                mx = acc[stages[k][0]]
                if first[stages[k][0]]:
                    first[stages[k][0]] = False
                    a(f'v_max3_f32 {mx}, v{s}, v{s+1}, v{s+2}')
                    for j in range(3, 15, 2):
                        a(f'v_max3_f32 {mx}, v{s+j}, v{s+j+1}, {mx}')
                    a(f'v_max_f32 {mx}, v{s+15}, {mx}')
                else:
                    for j in range(0, 16, 2):
                        a(f'v_max3_f32 {mx}, v{s+j}, v{s+j+1}, {mx}')
            for s_ in 'ab':
                mx = acc[s_]
                a(f'v_mov_b32 {vA4}, {mx}')
                a(f'v_permlane32_swap_b32 {mx}, {vA4}')
                a(f'v_max_f32 {mx}, {mx}, {vA4}')

        def pass2(stages, local, hook=None, pre=None):
            n = len(stages)
            ks = {}
            vs = {}
            first = {'a': local, 'b': local}
            ks[0] = kread(stages[0], KB[0])
            ks[1] = kread(stages[1], KB[1])
            vs[0] = vread(stages[0])
            if pre:
                pre()

            def issue(k):
                st = stages[k]
                sb = S[k % 2]
                if not local:
                    fix(st)
                C = vr(NM[st[0]], 16)
                if st[1] == 8:
                    for j in range(16):
                        a(f'v_cndmask_b32 v{sb+j}, {vBIG}, {MX[st[0]]}, {m(j)}')
                    C = vr(sb, 16)
                elif st[1] == 0:
                    for j in range(16):
                        a(f'v_cndmask_b32 v{sb+j}, v{NM[st[0]]+j}, {vBIG}, {m(j)}')
                    C = vr(sb, 16)
                a.wait(ks[k])
                qk(st, sb, KB[k % 2], C)
                if k + 2 < n:
                    ks[k+2] = kread(stages[k+2], KB[k % 2])

            def pv(k, half):
                st = stages[k]
                o = O[st[0]]
                C = vr(o, 16)
                if half == 0:
                    a.wait(vs[k])
                    if first[st[0]]:
                        first[st[0]] = False
                        C = '0'
                a(f'{MF32} {vr(o,16)}, {vr(VB+4*half,4)}, {vr(S[k%2]+4*half,4)}, {C}')
            issue(0)
            for k in range(n):
                s = S[k % 2]
                ops = []
                for j in range(16):
                    ops.append(f'v_exp_f32 v{s+j}, v{s+j}')
                    if j % 2 == 1 and j >= 3:
                        jj = (j - 3) // 2
                        ops.append(f'v_cvt_pk_bf16_f32 v{s+jj}, v{s+2*jj}, v{s+2*jj+1}')
                ops.append(f'v_cvt_pk_bf16_f32 v{s+7}, v{s+14}, v{s+15}')
                for i, o in enumerate(ops):
                    if k > 0 and i == 0:
                        pv(k-1, 0)
                    if k > 0 and i == 4:
                        pv(k-1, 1)
                        vs[k] = vread(stages[k])
                    if i == 9 and k + 1 < n:
                        issue(k + 1)
                    if hook and i in (14, 19):
                        hook(k)
                    a(o)
            pv(n-1, 0)
            pv(n-1, 1)

        loc = [('a', 8), ('b', 8), ('b', 7), ('b', 6)]
        hal = [('a', 7), ('b', 5), ('a', 6), ('b', 4), ('a', 5), ('b', 3), ('a', 4), ('b', 2), ('a', 3), ('b', 1), ('a', 2), ('b', 0), ('a', 1), ('a', 0)]
        a.wait(qs)
        pass1(loc, True)
        if l == 0:
            self.wt_flag()
        for s_ in 'ab':
            a(f'v_sub_f32 {MX[s_]}, 0, {MX[s_]}')
        late = a.newlabel('hlate')
        a.wait(hp)
        self.cmpflag(0)
        a(f's_mov_b32 {sHD}, 0\ns_cmp_eq_u64 vcc, 0\ns_cbranch_scc0 {late}')
        sv = a.vm
        self.halo_dma()
        a.vm = sv
        a(f's_mov_b32 {sHD}, 1')
        a.label(late)

        def setnm():
            for s_ in 'ba':
                for j in range(16):
                    a(f'v_mov_b32 v{NM[s_]+j}, {MX[s_]}')
        pass2(loc, True, pre=setnm)
        self.stamp('attl')
        if l == 0:
            self.wt_issue()
        done = a.newlabel('hdone')
        a(f's_cmp_eq_u32 {sHD}, 1\ns_cbranch_scc1 {done}')
        self.poll_loop(vA3)
        sv = a.vm
        self.halo_dma()
        a.vm = sv
        a.label(done)
        a(f'v_mov_b32 {DL["a"]}, 0\nv_mov_b32 {DL["b"]}, 0')
        a.wait_all()
        a('s_barrier')
        self.stamp('halo')
        if l == 0:
            self.wt_check()
            self.stamp('wt')
            self.bgq.append(self.res_load)
        self.wreg_bg(WOT, 0x10000, 0x4000, 8, lambda i, j: vr(X+8*i+4*j, 4))
        self.w1_bg((0, 1, 2, 3))
        if l == 0:
            self.wreg_bg(W2T, 0x38000, 28*2048, self.opt.get('w2a', 4), lambda i, j: ar(8*i+4*j, 4))
        if l == 0 and self.opt.get('pf', 1):
            pf = self.prefetch_out()
            st = len(self.bgq) // len(pf)
            for i, f in enumerate(pf):
                self.bgq.insert(i*(st+1), f)
        nb = len(self.bgq)
        pass1(hal, False, hook=lambda k: self.bg(1))
        self.stamp('att1')

        def rescale():
            for s_ in 'ab':
                a(f'v_sub_f32 {MX[s_]}, {MX[s_]}, {DL[s_]}')
                a(f'v_sub_f32 {DL[s_]}, 0, {DL[s_]}')
                a(f'v_exp_f32 {DL[s_]}, {DL[s_]}')
            setnm()
            for s_ in 'ab':
                for j in range(9):
                    a(f'v_mul_f32 v{O[s_]+j}, v{O[s_]+j}, {DL[s_]}')
        per = -(-len(self.bgq) // 26)
        pass2(hal, False, hook=lambda k: self.bg(per), pre=rescale)
        assert not self.bgq
        a(f'''
        s_lshl_b32 {sT1}, {sM}, 11
        s_add_u32 {sT0}, {sGB}, {sT1}
        s_lshl_b32 {sT1}, {sFT}, 10
        s_add_u32 {sT0}, {sT0}, {sT1}
        s_add_u32 {sT0}, {sT0}, {OF + l*self.os}
        s_lshl_b32 {sT1}, {sTT}, 15
        s_add_u32 {sT2}, {sT0}, {sT1}
        v_add_u32 {vA1}, {sT2}, {vL16}
        s_sub_u32 {sT2}, {sT0}, {sT1}
        s_add_u32 {sT2}, {sT2}, {3*32768}
        v_add_u32 {vA2}, {sT2}, {vL16}
        ''')
        for s_, va in (('b', vA2), ('a', vA1)):
            o = O[s_]
            a(f'v_rcp_f32 {vA0}, v{o+8}')
            for j in range(8):
                a(f'v_mul_f32 v{o+j}, v{o+j}, {vA0}')
            for j in range(4):
                a(f'v_cvt_pk_bf16_f32 v{o+j}, v{o+2*j}, v{o+2*j+1}')
            st = self.stores([f'global_store_dwordx4 {va}, {vr(o,4)}, {sWS}'])
        a(f'''
        s_lshl_b32 {sT0}, {sG}, 2
        s_lshr_b32 {sT1}, {sM}, 2
        s_add_u32 {sT0}, {sT0}, {sT1}
        s_lshl_b32 {sT0}, {sT0}, 7
        s_and_b32 {sT1}, {sM}, 3
        s_lshl_b32 {sT1}, {sT1}, 2
        s_add_u32 {sT1}, {sT1}, {sW}
        s_lshl_b32 {sT1}, {sT1}, 2
        s_add_u32 {sT0}, {sT0}, {sT1}
        s_add_u32 {sT0}, {sT0}, {F_O + l*0x4000}
        v_mov_b32 {vA3}, {sT0}
        ''')
        self.ost = st

    def unpack_res(self, dst):
        a = self.a
        for i in range(8):
            a(f'v_lshlrev_b32 v{dst+2*i}, 16, v{RES+i}')
            a(f'v_and_b32 v{dst+2*i+1}, 0xffff0000, v{RES+i}')

    def act_addr(self, tile_stride, base_lines, bias):
        a = self.a
        a(base_lines)
        a(f'''
        s_mul_i32 {sT1}, {sTT}, {tile_stride}
        s_add_u32 {sT2}, {sT0}, {sT1}
        s_sub_u32 {sT1}, {tile_stride}, {sT1}
        s_add_u32 {sT3}, {sT0}, {sT1}
        s_add_u32 {sT2}, {sT2}, {bias}
        s_add_u32 {sT3}, {sT3}, {bias}
        v_add_u32 {vA1}, {sT2}, {vL16}
        v_add_u32 {vA2}, {sT3}, {vL16}
        ''')

    def reduce_addr(self, RA):
        a = self.a
        for i in range(4):
            a(f'''
            s_xor_b32 {sT0}, {sW}, {i}
            s_mul_i32 {sT0}, {sT0}, {3*4096}
            s_add_u32 {sT0}, {sT0}, {LB + max(i-1, 0)*4096}
            v_add_u32 v{RA+i}, {sT0}, {vL16}
            ''')

    def reduce64(self, TMP, RA, late):
        a = self.a
        w = [f'ds_write_b128 v{RA+i}, {vr(ACC+16*i+4*j,4)} offset:{j*1024}' for i in range(1, 4) for j in range(4)]
        k = 0
        while w or late:
            if late:
                a(late.pop(0))
            for _ in range(2 if k % 2 else 1):
                if w:
                    a(w.pop(0))
            k += 1
        a.wait_all(vm=False)
        a('s_barrier')
        rd = []
        for i in range(12):
            rd.append(a(f'ds_read_b128 {vr(TMP+4*i,4)}, v{RA} offset:{(i%3)*4096+(i//3)*1024}'))
        for q in range(4):
            for i in range(3):
                a.wait(rd[3*q+i])
                for j in range(4):
                    r = ACC + q*4 + j
                    a(f'v_add_f32 v{r}, v{r}, v{TMP+4*(3*q+i)+j}')
            for i in (2*q, 2*q+1):
                a(f'v_cvt_pk_bf16_f32 v{RES+i}, v{ACC+2*i}, v{ACC+2*i+1}')

    def xpub_addr(self, inst, PA):
        a = self.a
        a(f'''
        s_and_b32 {sT1}, {sTQ}, 3
        s_lshl_b32 {sT1}, {sT1}, 15
        s_add_u32 {sT0}, {sGB}, {sT1}
        s_lshl_b32 {sT1}, {sPQ}, 11
        s_add_u32 {sT0}, {sT0}, {sT1}
        s_add_u32 {sT0}, {sT0}, {XF + self.xo[inst]}
        v_add_u32 v{PA}, {sT0}, {vL16}
        s_lshl_b32 {sT0}, {sTQ}, 12
        s_lshl_b32 {sT1}, {sPQ}, 8
        s_add_u32 {sT0}, {sT0}, {sT1}
        s_add_u32 {sT0}, {sT0}, {ST + inst*self.ss}
        v_lshlrev_b32 v{PA+1}, 3, {vT}
        v_lshl_add_u32 v{PA+1}, {vH}, 2, v{PA+1}
        v_add_u32 v{PA+1}, {sT0}, v{PA+1}
        s_lshl_b32 {sT0}, {sTQ}, 7
        s_lshl_b32 {sT1}, {sPQ}, 2
        s_add_u32 {sT0}, {sT0}, {sT1}
        s_add_u32 {sT0}, {sT0}, {F_X + inst*0x2000}
        v_mov_b32 v{PA+2}, {sT0}
        ''')

    def x_publish(self, inst, PA):
        a = self.a
        self.stores([f'global_store_dwordx4 v{PA}, {vr(RES,4)}, {sWS}',
                     f'global_store_dwordx4 v{PA}, {vr(RES+4,4)}, {sWS} offset:1024'])
        s, q = vA0, vA4
        a(f'v_mov_b32 {s}, 0\nv_mov_b32 {q}, 0')
        for i in range(8):
            a(f'v_dot2_f32_bf16 {s}, v{RES+i}, {sONE2}, {s}')
            a(f'v_dot2_f32_bf16 {q}, v{RES+i}, v{RES+i}, {q}')
        a(f'v_permlane32_swap_b32 {s}, {q}\ns_nop 1\nv_add_f32 {s}, {s}, {q}')
        st = self.stores([f'global_store_dword v{PA+1}, {s}, {sWS}'])
        self.xaddr(inst)
        a.wait(st)
        self.flag_store(f'v{PA+2}')

    def p2(self, l):
        a = self.a
        RA, PA = 228, 232
        AB = 96
        if l == 0:
            a.wait(self.rs)
        self.act_addr(0x8000, f'''
        s_lshl_b32 {sT1}, {sRH}, 16
        s_add_u32 {sT0}, {sGB}, {sT1}
        s_add_u32 {sT0}, {sT0}, {sW8K}
        s_add_u32 {sT0}, {sT0}, {OF + l*self.os}
        ''', 4096)
        a(f'''
        s_lshl_b32 {sT0}, {sG}, 2
        s_add_u32 {sT0}, {sT0}, {sW}
        s_lshl_b32 {sT0}, {sT0}, 7
        s_add_u32 {sT0}, {sT0}, {F_O + l*0x4000}
        v_and_b32 {vA0}, 15, {vLANE}
        v_lshl_add_u32 {vA0}, {vA0}, 2, {sT0}
        ''')
        self.reduce_addr(RA)
        self.xpub_addr(2*l+1, PA)
        a.wait(self.ost)
        self.flag_store(vA3)
        self.stamp('att2')
        self.unpack_res(ACC)
        self.poll_loop(vA0)
        self.stamp('oflag')
        seqs = {}
        for k in range(8):
            b = AB + 8*k
            s0 = a(f'global_load_dwordx4 {vr(b,4)}, {vA1}, {sWS} offset:{k*1024-4096} sc1')
            s1 = a(f'global_load_dwordx4 {vr(b+4,4)}, {vA2}, {sWS} offset:{k*1024-4096} sc1')
            seqs[k] = (s0, s1)
        if l == 0:
            self.wreg_bg(W2T, 0x38000, 28*2048, self.opt.get('w2b', 12), lambda i, j: ar(8*i+4*j, 4), lo=self.opt.get('w2a', 4))
            self.bg(100)
        wreg = lambda k, j: vr(X + 8*k + 4*j, 4)
        late = []
        for k in range(8):
            b = AB + 8*k
            c = lambda i: '0' if k == 0 else vr(ACC+16*i, 16)
            a.wait(seqs[k][0])
            a(f'{MF32} {vr(ACC+16,16)}, {wreg(k,1)}, {vr(b,4)}, {c(1)}')
            late.append(f'{MF32} {vr(ACC,16)}, {wreg(k,0)}, {vr(b,4)}, {vr(ACC,16)}')
            a.wait(seqs[k][1])
            a(f'{MF32} {vr(ACC+32,16)}, {wreg(k,0)}, {vr(b+4,4)}, {c(2)}')
            a(f'{MF32} {vr(ACC+48,16)}, {wreg(k,1)}, {vr(b+4,4)}, {c(3)}')
        self.stamp('p2mm')
        a('s_barrier')
        a(late.pop(0))
        a(late.pop(0))
        self.reduce64(X, RA, late)
        self.stamp('p2red')
        self.x_publish(2*l+1, PA)
        self.stamp('p2')

    def p3(self, l):
        a = self.a
        WA = ['v232', 'v233']
        SD = 236
        WB = ACC + 48
        GT = 236
        vHA = 'v234'
        vHF = 'v235'

        def wr(dst, s, c):
            if c < 2:
                return a(f'ds_read_b128 {vr(dst,4)}, {vL16} offset:{c*32768 + s*1024}')
            if c == 2:
                return a(f'ds_read_b128 {vr(dst,4)}, {WA[0]} offset:{s*1024}')
            return a(f'ds_read_b128 {vr(dst,4)}, {WA[1]} offset:{s*512}')
        a(f'''
        v_add_u32 {WA[0]}, {A2}, {vL16}
        v_and_b32 {vA0}, 15, {vLANE}
        v_lshl_add_u32 {vA0}, {vH}, 4, {vA0}
        v_lshlrev_b32 {vA0}, 4, {vA0}
        v_add_u32 {WA[1]}, {A3}, {vA0}
        s_mul_i32 {sT1}, {sW}, {112*1024}
        s_add_u32 {sT0}, {sGB}, {sT1}
        s_mul_i32 {sT1}, {sM}, {7*1024}
        s_add_u32 {sT0}, {sT0}, {sT1}
        s_add_u32 {sT0}, {sT0}, {HF + l*self.hs + 4096}
        v_add_u32 {vHA}, {sT0}, {vL16}
        s_lshl_b32 {sT0}, {sG}, 1
        s_add_u32 {sT0}, {sT0}, {sTT}
        s_lshl_b32 {sT0}, {sT0}, 2
        s_lshr_b32 {sT1}, {sM}, 2
        s_add_u32 {sT0}, {sT0}, {sT1}
        s_lshl_b32 {sT0}, {sT0}, 7
        s_and_b32 {sT1}, {sM}, 3
        s_lshl_b32 {sT1}, {sT1}, 1
        s_add_u32 {sT1}, {sT1}, {sFT}
        s_lshl_b32 {sT1}, {sT1}, 2
        s_add_u32 {sT0}, {sT0}, {sT1}
        s_add_u32 {sT0}, {sT0}, {F_H + l*0x8000}
        v_mov_b32 {vHF}, {sT0}
        ''')
        sl, xs = self.xload(2*l+1, SD)
        if l == 0:
            self.wreg_bg(W2T, 0x38000, 28*2048, 28, lambda i, j: ar(8*i+4*j, 4), lo=self.opt.get('w2b', 12))
            PO, CS, CB = ACC, ACC + 4, ACC + 8
            self.pattern_ones(PO)
            a(f'''
            s_cmp_eq_u32 {sW}, 3
            s_cselect_b64 vcc, -1, 0
            s_cselect_b32 {sT2}, 9, 10
            s_lshl_b32 {sT2}, 1, {sT2}
            s_lshl_b32 {sT0}, {sW}, 15
            v_add_u32 {vA0}, {sT0}, {vL16}
            v_cndmask_b32 {vA0}, {vA0}, {WA[1]}, vcc
            v_and_b32 {vA2}, 15, {vLANE}
            v_cndmask_b32 {vA2}, {vT}, {vA2}, vcc
            s_mul_i32 {sT0}, {sM}, 224
            s_lshl_b32 {sT1}, {sW}, 6
            s_add_u32 {sT0}, {sT0}, {sT1}
            v_lshl_add_u32 {vA2}, {vA2}, 1, {sT0}
            ''')
            bl = a(f'global_load_ushort {vA4}, {vA2}, {sB1}')
            rd = {}

            def crd(s):
                rd[s] = a(f'ds_read_b128 {vr(CB+4*(s%8),4)}, {vA0}')
                a(f'v_add_u32 {vA0}, {sT2}, {vA0}')
            for s in range(8):
                crd(s)
            for s in range(32):
                a.wait(rd[s])
                a(f'{MF16} {vr(CS,4)}, {vr(PO,4)}, {vr(CB+4*(s%8),4)}, {"0" if s == 0 else vr(CS,4)}')
                if s + 8 < 32:
                    crd(s + 8)
            self.ext_w(f'v{CS}', vA0, CB+2)
        acc = [ACC, ACC + 16, ACC + 32, ACC]

        def gelu(c):
            A = acc[c]
            n = 8 if c == 3 else 16
            o = []
            P = 224 if c % 2 else GT + 4
            for j0 in range(0, n, 4):
                t = [f'v{GT+i}' for i in range(4)]
                x = [f'v{A+j0+i}' for i in range(4)]
                for i in range(4):
                    o.append(f'v_mul_f32 {t[i]}, {x[i]}, {x[i]}')
                for i in range(4):
                    o.append(f'v_fma_f32 {t[i]}, {t[i]}, {vK1}, {vK0}')
                for i in range(4):
                    o.append(f'v_mul_f32 {t[i]}, {t[i]}, {x[i]}')
                for i in range(4):
                    o.append(f'v_exp_f32 {t[i]}, {t[i]}')
                for i in range(4):
                    o.append(f'v_fma_f32 {t[i]}, {t[i]}, {vS}, {vS}')
                for i in range(4):
                    o.append(f'v_rcp_f32 {t[i]}, {t[i]}')
                for i in range(4):
                    o.append(f'v_mul_f32 {t[i]}, {t[i]}, {x[i]}')
                o.append(f'v_cvt_pk_bf16_f32 v{P+j0//2}, {t[0]}, {t[1]}')
                o.append(f'v_cvt_pk_bf16_f32 v{P+j0//2+1}, {t[2]}, {t[3]}')

            def st():
                ls = [f'global_store_dwordx4 {vHA}, {vr(P,4)}, {sWS} offset:{2*c*1024-4096}']
                if c < 3:
                    ls.append(f'global_store_dwordx4 {vHA}, {vr(P+4,4)}, {sWS} offset:{(2*c+1)*1024-4096}')
                self.hst = self.stores(ls)
            o.append(('call', st))
            return o

        def ext(c):
            xe = XE + 2 if c % 2 == 0 else XE
            a(f'{MF32} {vr(acc[c],16)}, {ar(AEXT+4*(c//2),4)}, {vr(xe,4)}, {vr(acc[c],16)}')
        wl = {}
        for s in range(2):
            b = WB + 8*(s % 3)
            wl[s] = (wr(b, s, 0), wr(b+4, s, 1))
        so = self.stats_ops(SD, True)
        for s in range(32):
            b = WB + 8*(s % 3)
            a.wait(xs[s], wl[s][1])
            a(f'{MF32} {vr(acc[0],16)}, {vr(b,4)}, {vr(X+4*s,4)}, {"0" if s == 0 else vr(acc[0],16)}')
            b2 = WB + 8*((s+2) % 3)
            if s + 2 < 32:
                w0 = wr(b2, s+2, 0)
            if s >= 8:
                for o in so[:2]:
                    a(o)
                so = so[2:]
            a(f'{MF32} {vr(acc[1],16)}, {vr(b+4,4)}, {vr(X+4*s,4)}, {"0" if s == 0 else vr(acc[1],16)}')
            if s + 2 < 32:
                wl[s+2] = (w0, wr(b2+4, s+2, 1))
            if s >= 16:
                self.bg(1)
        for o in so:
            a(o)
        if l == 0:
            a.wait(bl)
            a(f'''
            v_lshl_or_b32 {vA1}, {vA4}, 16, {vA4}
            s_mul_i32 {sT0}, {sW}, {3*4096}
            s_add_u32 {sT0}, {sT0}, {LB}
            v_lshl_add_u32 {vA2}, {vLANE}, 3, {sT0}
            ds_write_b64 {vA2}, v[26:27]
            v_lshlrev_b32 {vA2}, 3, {vLANE}
            v_add_u32 {vA2}, {LB}, {vA2}
            s_waitcnt lgkmcnt(0)
            s_barrier
            ''')
            for c in range(4):
                a(f'ds_read_b64 {ar(AEXT+2*c,2)}, {vA2} offset:{c*3*4096}')
            a('s_waitcnt lgkmcnt(0)')

            def wsetup():
                a(f'''
                v_lshrrev_b32 {vBG1}, 2, {vLANE}
                v_and_b32 {vBG2}, 3, {vLANE}
                s_movk_i32 {sT0}, 3072
                v_mul_u32_u24 {vBG1}, {sT0}, {vBG1}
                v_lshl_add_u32 {vBG1}, {vBG2}, 4, {vBG1}
                s_mul_i32 {sT0}, {sW}, 49152
                s_lshl_b32 {sT1}, {sM}, 6
                s_add_u32 {sT0}, {sT0}, {sT1}
                v_add_u32 {vBG0}, {sT0}, {vBG1}
                ''')
            self.bgq.append(wsetup)
            for q in range(8):
                for p in (1, 2):
                    self.bgq.append(lambda q=q, p=p: self.wqkv_dma1(vBG0, vBG1, q, p))
        ext(0)
        ext(1)
        self.stamp('p3a')

        def tilepass(c, ops, hooks):
            wl = {}
            for s in range(3):
                wl[s] = wr(WB + 4*(s % 4), s, c)
            per = -(-len(ops) // hooks.get('n', 31))
            for s in range(32):
                a.wait(wl[s])
                a(f'{MF32} {vr(acc[c],16)}, {vr(WB+4*(s%4),4)}, {vr(X+4*s,4)}, {"0" if s == 0 else vr(acc[c],16)}')
                if s + 3 < 32:
                    wl[s+3] = wr(WB + 4*((s+3) % 4), s+3, c)
                if s >= 1:
                    for o in ops[:per]:
                        self.do(o)
                    ops = ops[per:]
                if s % 2 == 0:
                    self.bg(1)
                if s in hooks:
                    hooks[s]()
            assert not ops
            ext(c)
        tilepass(2, gelu(0) + gelu(1), {})
        self.stamp('p3b')
        hA = self.hst

        def flagA():
            a.wait(hA)
            self.flag_store(vHF)

        def p4pre():
            self.act_addr(112*1024, f'''
            s_mul_i32 {sT1}, {sRH}, {2*112*1024}
            s_add_u32 {sT0}, {sGB}, {sT1}
            s_mul_i32 {sT1}, {sW}, {28*1024}
            s_add_u32 {sT0}, {sT0}, {sT1}
            s_add_u32 {sT0}, {sT0}, {HF + l*self.hs}
            ''', 3072)
            a(f'''
            s_lshl_b32 {sT0}, {sG}, 1
            s_add_u32 {sT0}, {sT0}, {sRH}
            s_lshl_b32 {sT0}, {sT0}, 2
            s_add_u32 {sT0}, {sT0}, {sW}
            s_lshl_b32 {sT0}, {sT0}, 7
            s_add_u32 {sT0}, {sT0}, {F_H + l*0x8000}
            v_and_b32 {vA3}, 7, {vLANE}
            v_lshl_add_u32 {vA3}, {vA3}, 2, {sT0}
            s_lshl_b32 {sT0}, {sPQ}, 6
            v_lshl_add_u32 {vA0}, {vH}, 3, {sT0}
            ''')
            for i in range(4):
                self.bl = a(f'global_load_dwordx2 {vr(ACC+16+2*i,2)}, {vA0}, {sB2} offset:{16*i}')

        def pollA():
            self.hp = self.poll_issue(vA3)
        tilepass(3, gelu(2), {12: flagA, 20: p4pre, 30: pollA})
        self.bg(100)
        self.stamp('p3c')
        self.g3 = gelu(3)
        self.vHF = vHF

    def p4(self, l):
        a = self.a
        RA, PA = 224, 228
        vHF = self.vHF
        R = 16
        order = [(mm, j) for mm in range(4) for j in range(4)] + [(mm, j) for mm in range(4) for j in range(4, 7)]
        seqs = {}
        cur = [0]

        def ld(n):
            mm, j = order[n]
            if mm != cur[0]:
                d = (mm - cur[0]) * 7168
                a(f'v_add_u32 {vA1}, {hx(d)}, {vA1}\nv_add_u32 {vA2}, {hx(d)}, {vA2}')
                cur[0] = mm
            b = X + 8*(n % R)
            s0 = a(f'global_load_dwordx4 {vr(b,4)}, {vA1}, {sWS} offset:{j*1024-3072} sc1')
            s1 = a(f'global_load_dwordx4 {vr(b+4,4)}, {vA2}, {sWS} offset:{j*1024-3072} sc1')
            seqs[n] = (s0, s1)
        if l == 0:
            a('s_barrier')
        self.poll_check(self.hp, vA3)
        self.stamp('hflag')
        g3 = self.g3
        for n in range(4):
            ld(n)
            for o in g3[:16]:
                self.do(o)
            g3 = g3[16:]
        assert not g3
        hB = self.hst
        for n in range(4, 12):
            ld(n)
        a(f'v_add_u32 {vA3}, 0x4000, {vA3}\nv_add_u32 {vHF}, 0x4000, {vHF}')
        BT = ACC + 16
        a.wait(self.bl)
        self.unpack_res(ACC)
        for i in range(8):
            a(f'v_lshlrev_b32 {vA0}, 16, v{BT+i}')
            a(f'v_and_b32 {vA4}, 0xffff0000, v{BT+i}')
            a(f'v_add_f32 v{ACC+2*i}, v{ACC+2*i}, {vA0}')
            a(f'v_add_f32 v{ACC+2*i+1}, v{ACC+2*i+1}, {vA4}')
        self.reduce_addr(RA)
        if l == 0:
            self.xpub_addr(2, PA)
        else:
            self.res_addr(f'v{PA}')
        late = []
        PB = self.opt.get('pb', 6)
        for n in range(28):
            mm, j = order[n]
            k = 7*mm + j
            b = X + 8*(n % R)
            wreg = lambda jj: ar(8*k + 4*jj, 4)
            c = lambda i: '0' if n == 0 else vr(ACC+16*i, 16)
            a.wait(seqs[n][0])
            a(f'{MF32} {vr(ACC+16,16)}, {wreg(1)}, {vr(b,4)}, {c(1)}')
            m0 = f'{MF32} {vr(ACC,16)}, {wreg(0)}, {vr(b,4)}, {vr(ACC,16)}'
            if n >= 20:
                late.append(m0)
            else:
                a(m0)
            a.wait(seqs[n][1])
            a(f'{MF32} {vr(ACC+32,16)}, {wreg(0)}, {vr(b+4,4)}, {c(2)}')
            a(f'{MF32} {vr(ACC+48,16)}, {wreg(1)}, {vr(b+4,4)}, {c(3)}')
            if n == 3:
                a.wait(hB)
                self.flag_store(vHF)
            if n == PB:
                pb = self.poll_issue(vA3)
                for nn in range(12, 16):
                    ld(nn)
            if n == 11:
                self.poll_check(pb, vA3)
                self.stamp('hflagB')
                for nn in range(16, 28):
                    ld(nn)
                if l == 0:
                    for q in range(8):
                        self.bgq.append(lambda q=q: self.wqkv_dma1(vBG0, vBG1, q, 0))
            if n > 11:
                self.bg(1)
        self.stamp('p4mm')
        a(late.pop(0))
        a(late.pop(0))
        self.reduce64(X, RA, late)
        self.stamp('p4red')
        if l == 0:
            self.x_publish(2, PA)
            self.stamp('p4')
        else:
            for i in range(4):
                a(f'global_store_dwordx2 v{PA}, {vr(RES+2*i,2)}, {sOUT} offset:{16*i}')
            self.stamp('end')

    def finish(self):
        a = self.a
        sk = a.newlabel('noep')
        a(f'''
        s_or_b32 {sT0}, s2, {sW}
        s_cmp_lg_u32 {sT0}, 0
        s_cbranch_scc1 {sk}
        v_mov_b32 {vA0}, 0
        v_mov_b32 {vA1}, {sEP}
        global_store_dword {vA0}, {vA1}, {sWS} sc1
        ''')
        a.label(sk)
        if self.prof:
            a(f's_waitcnt vmcnt(0)\ns_memrealtime {sPT}\ns_waitcnt lgkmcnt(0)\nv_writelane_b32 v0, s54, 63')
            a(f'''
            s_lshl_b32 {sT0}, s2, 2
            s_add_u32 {sT0}, {sT0}, {sW}
            s_lshl_b32 {sT0}, {sT0}, 8
            s_add_u32 {sT0}, {sT0}, {PROF}
            v_lshl_add_u32 {vA0}, {vLANE}, 2, {sT0}
            global_store_dword {vA0}, v0, {sWS}
            ''')


if __name__ == '__main__':
    prof = 'prof' in sys.argv
    out = sys.argv[1] if len(sys.argv) > 1 else 'k.s'
    opt = {}
    for x in sys.argv[2:]:
        if '=' in x:
            k, v = x.split('=')
            opt[k] = int(v)
    g = Gen(prof=prof, opt=opt)
    t = g.build()
    open(out, 'w').write(t)
    print('instrs', g.a.ninstr, 'nops', g.a.nops, 'bytes', len(t))
    open(out + '.names', 'w').write(' '.join(g.names))
```

```python
import sys, math, struct
from asm2 import *

NAME = 'interleave_layers__sliding_block__mixer_channel_mlp__prompt_kernel'

FL = 0x1000
F_WT = FL
F_X = FL + 0x8000
F_O = FL + 0x10000
F_H = FL + 0x18000
F_KV = FL + 0x28000
ST = 0x80000
PROF = 0x180000
WT = 0x200000
W1T = WT
W2T = WT + 0x1C0000
WOT = WT + 0x380000
G0 = 0x600000
GB = 0x200000
XF = 0x0
OF = 0x60000
KV = 0xA0000
HF = 0x120000

A0, A1, A2, A3 = 0, 32768, 65536, 98304
LB = 114688
RING = 98304
QX = A3
RB = A3 + 8192

sX, sWQKV, sWO, sW1, sB1, sW2, sB2, sOUT, sDBG, sWS = 's[4:5]', 's[6:7]', 's[8:9]', 's[12:13]', 's[14:15]', 's[16:17]', 's[18:19]', 's[20:21]', 's[22:23]', 's[24:25]'
sG, sM, sW, sRH, sCT, sEP, sMODE, sGB = 's26', 's27', 's28', 's29', 's30', 's31', 's33', 's34'
sTT, sFT, sLIM, sONE2, sHM = 's35', 's36', 's37', 's38', 's[40:41]'
sLO16 = 's[42:43]'
sT0, sT1, sT2, sT3, sT4, sT5 = 's44', 's45', 's46', 's47', 's48', 's49'
sRING = 's50'
sCNT = 's51'
sXCC = 's52'
sPT = 's[54:55]'
sPI = 's56'
sIA, sIB = 's57', 's58'
sW1K = 's59'
sW8K = 's60'
sHD = 's61'
sTQ = 's62'
sPQ = 's63'
MASK0 = 64

vLANE, vL16, vT, vH = 'v1', 'v2', 'v3', 'v4'
vTR0, vTR1 = 'v5', 'v6'
vHZ = 'v7'
RES = 8
XE = 16
vR, vS, vK0, vK1 = 'v22', 'v23', 'v24', 'v25'
vA0, vA1, vA2, vA3, vA4, vA5 = 'v26', 'v27', 'v28', 'v29', 'v30', 'v31'
X = 32
ACC = 160
AEXT = 224
vBG0, vBG1, vBG2 = 'v253', 'v254', 'v255'

BIGNEG = 0xF149F2CA


def vr(b, n):
    return f'v[{b}:{b+n-1}]' if n > 1 else f'v{b}'


def ar(b, n):
    return f'a[{b}:{b+n-1}]' if n > 1 else f'a{b}'


def f2h(x):
    return hex(struct.unpack('<I', struct.pack('<f', x))[0])


def hx(x):
    return hex(x & 0xffffffff)


GK0 = -2.0 * math.sqrt(2.0 / math.pi) * math.log2(math.e)
GK1 = GK0 * 0.044715
MF32 = 'v_mfma_f32_32x32x16_bf16'
MF16 = 'v_mfma_f32_16x16x32_bf16'


class Gen:
    def __init__(self, prof=False, opt=None):
        self.a = Asm()
        self.prof = prof
        self.names = []
        self.bgq = []
        self.tail = []
        self.opt = opt or {}
        ru = self.opt.get('reuse', 1)
        self.hs = 0 if ru else 0x70000
        self.os = 0 if ru else 0x20000
        self.xo = {1: 0, 2: 0 if ru else 0x20000, 3: 0 if ru else 0x40000}
        self.ss = 0 if ru else 0x40000

    def stamp(self, name=''):
        if not self.prof:
            return
        a = self.a
        self.names.append(name)
        n = len(self.names) - 1
        a(f'''
        s_memtime {sPT}
        s_waitcnt lgkmcnt(0)
        v_writelane_b32 v0, s54, {n}
        ''')

    def bg(self, n=1):
        for _ in range(n):
            if self.bgq:
                self.bgq.pop(0)()

    def poll_loop(self, vaddr, shift=0):
        a = self.a
        lp = a.newlabel('poll')
        dn = a.newlabel('polld')
        a(f's_mov_b32 {sCNT}, 0')
        a.label(lp)
        a(f'global_load_dword {vA5}, {vaddr}, {sWS} sc1', count=False)
        a('s_waitcnt vmcnt(0)')
        self.cmpflag(shift)
        a(f'''
        s_add_u32 {sCNT}, {sCNT}, 1
        s_cmp_eq_u64 vcc, 0
        s_cbranch_scc1 {dn}
        s_cmp_lt_u32 {sCNT}, {sLIM}
        s_cbranch_scc1 {lp}
        s_mov_b32 {sLIM}, 1
        ''')
        a.label(dn)

    def cmpflag(self, shift):
        a = self.a
        if shift:
            a(f'v_xor_b32 {vA4}, {sEP}, {vA5}')
            a(f'v_cmp_le_u32 vcc, {1 << shift}, {vA4}')
        else:
            a(f'v_cmp_ne_u32 vcc, {sEP}, {vA5}')

    def poll_issue(self, vaddr):
        return self.a(f'global_load_dword {vA5}, {vaddr}, {sWS} sc1')

    def poll_check(self, seq, vaddr, shift=0):
        a = self.a
        ok = a.newlabel('pok')
        a.wait(seq)
        self.cmpflag(shift)
        a(f's_nop 0\ns_cmp_eq_u64 vcc, 0\ns_cbranch_scc1 {ok}')
        sv = (a.vm_done, a.lg_done)
        self.poll_loop(vaddr, shift)
        a.vm_done, a.lg_done = sv
        a.label(ok)

    def stores(self, lines):
        a = self.a
        sl = a.newlabel('slow')
        en = a.newlabel('sten')
        a(f's_cmp_eq_u32 {sMODE}, 1')
        a(f's_cbranch_scc0 {sl}')
        seq = None
        for ln in lines:
            seq = a(ln)
        a.label(en)
        self.tail.append(f'{sl}:\n    s_nop 15\n' + ''.join(f'    {ln} sc1\n' for ln in lines) + f'    s_nop 1\n    s_branch {en}')
        return seq

    def flag_store(self, vaddr, slow=False, val=None):
        a = self.a
        a(f'v_mov_b32 {vA4}, {val or sEP}')
        ln = f'global_store_dword {vaddr}, {vA4}, {sWS}'
        if slow:
            a(ln + ' sc1')
        else:
            self.stores([ln])

    def stats_load(self, inst, dst):
        a = self.a
        seq = None
        for j in range(8):
            seq = a(f'global_load_dwordx2 {vr(dst+2*j,2)}, {vA2}, {sWS} offset:{j*256} sc1')
        return seq

    def stats_ops(self, src, mlp, summed=False):
        o = []
        S, Q = f'v{src}', f'v{src+1}'
        if not summed:
            for j in range(1, 8):
                o.append(f'v_add_f32 {S}, {S}, v{src+2*j}')
                o.append(f'v_add_f32 {Q}, {Q}, v{src+2*j+1}')
        t0, t1, t2, t3 = [f'v{src+i}' for i in (2, 3, 4, 5)]
        o += [
            f'v_permlane32_swap_b32 {S}, {Q}',
            f'v_add_f32 {S}, {S}, {Q}',
            f'v_mov_b32 {Q}, {S}',
            f'v_permlane32_swap_b32 {S}, {Q}',
            f'v_mul_f32 {S}, 0xbb000000, {S}',
            f'v_mul_f32 {t0}, {S}, {S}',
            f'v_mul_f32 {Q}, 0x3b000000, {Q}',
            f'v_sub_f32 {Q}, {Q}, {t0}',
            f'v_max_f32 {Q}, 0, {Q}',
            f'v_add_f32 {t0}, 0x3727c5ac, {Q}',
            f'v_rsq_f32 {vR}, {t0}',
            f'v_cvt_pk_bf16_f32 {t1}, {S}, {S}',
            f'v_lshlrev_b32 {t1}, 16, {t1}',
            f'v_sub_f32 {t1}, {S}, {t1}',
            f'v_mul_f32 {t1}, {t1}, {vHZ}',
            f'v_cvt_pk_bf16_f32 v{XE+2}, {S}, {t1}',
        ]
        if mlp:
            o += [
                f'v_mul_f32 {t2}, {vR}, {vR}',
                f'v_mul_f32 {vS}, {t0}, {vR}',
                f'v_mov_b32 {t3}, 0x3727c5ac',
                f'v_fma_f32 {t2}, {Q}, {t2}, {t3}',
                f'v_rsq_f32 {t3}, {t2}',
                f'v_mul_f32 {vS}, {vS}, {t2}',
                f'v_mul_f32 {vR}, {vR}, {t3}',
                f'v_mul_f32 {vS}, {vS}, {t3}',
                f'v_cvt_pk_bf16_f32 {t1}, {vS}, {vS}',
                f'v_lshlrev_b32 {t1}, 16, {t1}',
                f'v_sub_f32 {t1}, {vS}, {t1}',
                f'v_mul_f32 {t1}, {t1}, {vHZ}',
                f'v_mul_f32 {t2}, {vS}, {vHZ}',
                f'v_cvt_pk_bf16_f32 v{XE+3}, {t2}, {t1}',
                f'v_mul_f32 {t0}, {vR}, {vR}',
                f'v_mul_f32 {vK0}, {f2h(GK0)}, {vR}',
                f'v_mul_f32 {t0}, {t0}, {vR}',
                f'v_mul_f32 {vK1}, {f2h(GK1)}, {t0}',
            ]
        else:
            o += [f'v_mov_b32 v{XE+3}, 0']
        return o

    def ext_w(self, c, dst, tmp):
        a = self.a
        t0, t1 = f'v{tmp}', f'v{tmp+1}'
        a(f'''
        v_cvt_pk_bf16_f32 {t0}, {c}, {c}
        v_lshlrev_b32 {t0}, 16, {t0}
        v_sub_f32 {t0}, {c}, {t0}
        v_cndmask_b32 {t0}, {c}, {t0}, {sHM}
        v_mul_f32 {t1}, {c}, {vHZ}
        v_cvt_pk_bf16_f32 {dst}, {t0}, {t1}
        ''')

    def trw(self, dst, s, part):
        a = self.a
        b, off = {0: (vTR1, 0), 1: (vTR0, A0), 2: (vTR0, A1)}[part]
        off += s * 1024
        a(f'ds_read_b64_tr_b16 {vr(dst,2)}, {b} offset:{off}')
        return a(f'ds_read_b64_tr_b16 {vr(dst+2,2)}, {b} offset:{off+512}')

    def wqkv_dma1(self, vsrc, vtmp, q, p):
        a = self.a
        base = {0: A2, 1: A0, 2: A1}[p]
        a(f's_add_u32 m0, {sW1K}, {hx(base + q*4096)}')
        a(f'v_add_u32 {vtmp}, {q*4*49152 + p*1024}, {vsrc}')
        return a(f'global_load_lds_dwordx4 {vtmp}, {sWQKV}' + (' nt' if self.opt.get('nt', 0) & 2 else ''))

    def pattern_ones(self, PO, vA2=vA2, vA3=vA3):
        a = self.a
        a(f'''
        v_bfe_u32 {vA2}, {vLANE}, 2, 1
        v_bfe_u32 {vA3}, {vLANE}, 4, 1
        v_cmp_eq_u32 vcc, {vA2}, {vA3}
        v_mov_b32 {vA2}, {sONE2}
        v_cndmask_b32 v{PO}, 0, {vA2}, vcc
        v_cndmask_b32 v{PO+1}, 0, {vA2}, vcc
        v_cndmask_b32 v{PO+2}, 0, {vA2}, vcc
        v_cndmask_b32 v{PO+3}, 0, {vA2}, vcc
        ''')

    def do(self, o):
        if isinstance(o, str):
            self.a(o)
        elif o[0] == 'wait':
            self.a.wait(*o[1:])
        elif o[0] == 'call':
            o[1]()

    def build(self):
        a = self.a
        a.raw('; @launch grid=(256,1,1) block=(256,1,1) lds=163840')
        a.raw('.amdgcn_target "amdgcn-amd-amdhsa--gfx950"\n.text')
        a.raw(kernel_head(NAME))
        self.prologue()
        for l in range(2):
            if l == 0:
                self.p1a_l0()
            else:
                self.p1a_l1()
            self.p1b(l)
            self.attention(l)
            self.p2(l)
            self.p3(l)
            self.p4(l)
        assert not self.bgq
        self.finish()
        a.label('.EXIT')
        a('s_endpgm')
        for t in self.tail:
            a.raw(t)
        a.raw('.section .rodata,"a"')
        a.raw(kernel_desc(NAME, 512, 256, 102))
        return a.text()

    def prologue(self):
        a = self.a
        a(f'''
        s_cmp_ge_u32 s2, 256
        s_cbranch_scc1 .EXIT
        s_load_dwordx4 s[4:7], s[0:1], 0
        s_load_dwordx2 s[24:25], s[0:1], 80
        s_load_dwordx2 s[8:9], s[0:1], 16
        s_load_dwordx8 s[12:19], s[0:1], 32
        s_load_dwordx4 s[20:23], s[0:1], 64
        v_lshrrev_b32 v5, 6, v0
        v_and_b32 {vLANE}, 63, v0
        s_and_b32 {sT0}, s2, 7
        v_readfirstlane_b32 {sW}, v5
        s_lshr_b32 {sT1}, s2, 3
        s_lshr_b32 {sT2}, {sT1}, 4
        s_lshl_b32 {sT0}, {sT0}, 1
        s_add_u32 {sG}, {sT0}, {sT2}
        s_and_b32 {sM}, {sT1}, 15
        s_lshr_b32 {sRH}, {sM}, 3
        s_and_b32 {sCT}, {sM}, 7
        s_lshr_b32 {sTT}, {sW}, 1
        s_and_b32 {sFT}, {sW}, 1
        s_lshl_b32 {sW1K}, {sW}, 10
        s_lshl_b32 {sW8K}, {sW}, 13
        v_lshlrev_b32 {vL16}, 4, {vLANE}
        v_and_b32 {vT}, 31, {vLANE}
        v_lshrrev_b32 {vH}, 5, {vLANE}
        v_mov_b32 v0, 0
        ''')
        if self.prof:
            a(f's_memrealtime {sPT}\ns_waitcnt lgkmcnt(0)\nv_writelane_b32 v0, s54, 62')

    def prologue2(self):
        a = self.a
        a(f'''
        s_mov_b32 {sMODE}, 0
        s_mov_b32 {sLIM}, 40000
        s_mov_b32 {sONE2}, 0x3f803f80
        s_mov_b32 s40, 0
        s_mov_b32 s41, -1
        s_mov_b32 s42, 0xffff
        s_mov_b32 s43, 0xffff
        s_lshl_b32 {sGB}, {sG}, 21
        s_add_u32 {sGB}, {sGB}, {G0}
        s_getreg_b32 {sXCC}, hwreg(HW_REG_XCC_ID)
        s_and_b32 {sXCC}, {sXCC}, 7
        s_lshl_b32 {sTQ}, {sG}, 2
        s_lshl_b32 {sT1}, {sRH}, 1
        s_add_u32 {sTQ}, {sTQ}, {sT1}
        s_add_u32 {sTQ}, {sTQ}, {sTT}
        s_lshl_b32 {sPQ}, {sCT}, 1
        s_add_u32 {sPQ}, {sPQ}, {sFT}
        v_cndmask_b32 {vHZ}, 1.0, 0, {sHM}
        v_bfe_u32 {vA0}, {vLANE}, 2, 2
        v_lshl_add_u32 {vA0}, {vH}, 2, {vA0}
        v_lshlrev_b32 {vA0}, 6, {vA0}
        v_bfe_u32 {vA1}, {vLANE}, 4, 1
        v_lshl_add_u32 {vA0}, {vA1}, 5, {vA0}
        v_and_b32 {vA1}, 3, {vLANE}
        v_lshl_add_u32 {vTR0}, {vA1}, 3, {vA0}
        v_add_u32 {vTR1}, {A2}, {vTR0}
        v_mov_b32 v{XE}, 0
        v_mov_b32 v{XE+1}, 0
        v_mov_b32 v{XE+4}, 0
        v_mov_b32 v{XE+5}, 0
        v_lshlrev_b32 {vA0}, 2, {vH}
        v_sub_u32 {vA0}, {vT}, {vA0}
        s_lshl_b32 {sT0}, {sG}, 2
        s_sub_i32 {sT0}, 7, {sT0}
        s_sub_i32 {sIA}, {sT0}, {sTT}
        s_add_i32 {sIB}, {sT0}, {sTT}
        s_sub_i32 {sIB}, {sIB}, 3
        ''')
        for j in range(16):
            c = 8 * (j >> 2) + (j & 3)
            a(f'v_cmp_le_i32 s[{MASK0+2*j}:{MASK0+2*j+1}], {c}, {vA0}')

    def res_addr(self, v):
        a = self.a
        a(f'''
        s_lshl_b32 {sT0}, {sTQ}, 15
        s_lshl_b32 {sT1}, {sPQ}, 6
        s_add_u32 {sT0}, {sT0}, {sT1}
        v_lshlrev_b32 {v}, 10, {vT}
        v_lshl_add_u32 {v}, {vH}, 3, {v}
        v_add_u32 {v}, {sT0}, {v}
        ''')

    def p1a_l0(self):
        a = self.a
        accK, accV = ACC, ACC + 16
        WB = ACC + 32
        XT = 216
        PO = 224
        CS = 228
        XA = 240
        XR = 244
        WS_ = 'v248'
        vEPO = 'v249'
        vTM = 'v250'
        SM, SQ, ON = RES, RES + 4, 22
        vCT = vK0
        TS = X + 4*28
        AQ, AS = 32, 64
        MF4 = 'v_mfma_f32_4x4x4_16b_bf16'
        XCH = A1 + 2*4096
        a(f"""
        v_lshrrev_b32 {vA0}, 2, {vLANE}
        v_and_b32 {vA1}, 3, {vLANE}
        v_and_b32 {vA2}, 3, {vA0}
        v_bfe_u32 {vA3}, {vA0}, 2, 1
        v_lshl_add_u32 {vA2}, {vA3}, 3, {vA2}
        v_bfe_u32 {vA3}, {vA0}, 3, 1
        v_lshl_add_u32 {vA2}, {vA3}, 2, {vA2}
        s_movk_i32 {sT2}, 3072
        v_mul_u32_u24 {vA2}, {sT2}, {vA2}
        v_lshl_add_u32 {vA2}, {vA1}, 4, {vA2}
        s_mul_i32 {sT0}, {sW}, 49152
        s_lshl_b32 {sT1}, {sM}, 6
        s_add_u32 {sT0}, {sT0}, {sT1}
        v_add_u32 {WS_}, {sT0}, {vA2}
        s_lshl_b32 {sT0}, {sG}, 7
        s_lshl_b32 {sT1}, {sW}, 5
        s_add_u32 {sT0}, {sT0}, {sT1}
        s_lshl_b32 {sT0}, {sT0}, 10
        s_lshl_b32 {sRING}, {sW}, 14
        s_add_u32 {sRING}, {sRING}, {RING}
        v_lshrrev_b32 {vA0}, 3, {vLANE}
        v_and_b32 {vA1}, 7, {vLANE}
        v_lshrrev_b32 {vA2}, 1, {vA0}
        v_xor_b32 {vA1}, {vA1}, {vA2}
        v_lshlrev_b32 {vA0}, 10, {vA0}
        v_add_u32 {vA0}, {sT0}, {vA0}
        v_lshl_add_u32 v{XA}, {vA1}, 4, {vA0}
        v_xor_b32 {vA1}, 4, {vA1}
        v_lshl_add_u32 v{XA+1}, {vA1}, 4, {vA0}
        v_add_u32 v{XA+1}, 8192, v{XA+1}
        v_add_u32 v{XA+2}, 16384, v{XA}
        v_add_u32 v{XA+3}, 16384, v{XA+1}
        s_lshr_b32 {sT0}, s2, 3
        s_lshl_b32 {sT0}, {sT0}, 1
        s_lshl_b32 {sT1}, {sW}, 6
        s_add_u32 {sT0}, {sT0}, {sT1}
        v_bfe_u32 {vA3}, {vLANE}, 4, 1
        v_add_u32 {vA3}, {sT0}, {vA3}
        v_mul_u32_u24 {vA3}, {sT2}, {vA3}
        v_and_b32 {vA4}, 15, {vLANE}
        v_lshl_add_u32 v{TS+5}, {vA4}, 7, {vA3}
        v_add_u32 v{TS+6}, {256*3072}, v{TS+5}
        v_and_b32 {vA4}, 7, {vLANE}
        v_lshl_add_u32 {vA3}, {vA4}, 7, {vA3}
        v_bfe_u32 {vA5}, {vLANE}, 3, 1
        s_mov_b32 {sT2}, {256*3072}
        v_mad_u32_u24 v{TS+7}, {vA5}, {sT2}, {vA3}
        s_lshl_b32 {sT0}, {sG}, 17
        s_lshl_b32 {sT1}, {sM}, 13
        s_add_u32 {sT0}, {sT0}, {sT1}
        s_lshl_b32 {sT1}, {sW}, 7
        s_add_u32 {sT0}, {sT0}, {sT1}
        v_lshl_add_u32 {vA4}, {vA4}, 10, {sT0}
        v_lshl_add_u32 {vA4}, {vA5}, 9, {vA4}
        s_waitcnt lgkmcnt(0)
        """)
        self.stamp('start')
        cp = self.opt.get('cp', 1)
        gs = {}
        xr = {}
        cnt = {}
        cur = [-1]

        def xd(c, j):
            if c >= 4:
                a.wait(xr[c-4])
            a(f's_add_u32 m0, {sRING}, {hx((c % 4)*4096 + j*1024 - c*128)}')
            gs[c] = a(f'global_load_lds_dwordx4 v{XA+j}, {sX} offset:{c*128}')
            cnt[c] = cnt.get(c, 0) + 1

        def wd(c, p):
            gs[c-1] = self.wqkv_dma1(WS_, vTM, c, p)
            cnt[c-1] = cnt.get(c-1, 0) + 1
        ops = []
        if cp:
            ops.append(lambda: a(f'global_load_dword v252, {vA4}, {sX}\nglobal_load_dword v252, v{TS+5}, {sWQKV} offset:1024'))
        ops += [lambda: wd(0, 1), lambda: wd(0, 2)]
        for c in range(8):
            ops += [lambda c=c, j=j: xd(c, j) for j in range(4)]
            if c < 7:
                ops += [lambda c=c: wd(c+1, 1), lambda c=c: wd(c+1, 2)]
            if c == 0:
                ops.append(lambda: a(f'v_mov_b32 {vA0}, 0\nglobal_load_dword {vEPO}, {vA0}, {sWS} sc1'))
                if cp:
                    ops.append(lambda: a(f'global_load_dword v252, v{TS+6}, {sWQKV} offset:1024'))
            if c == self.opt.get('cq', 2) and cp:
                ops.append(lambda: a(f'global_load_dword v252, v{TS+7}, {sWQKV}'))
            if c == self.opt.get('np', 3) - 1:
                npro = len(ops)
        tjs = []
        for i in range(5):
            def td(i=i):
                assert cur[0] >= 14
                a(f's_add_u32 m0, {sW1K}, {(A0 + i*4096) if i < 3 else (A1 + (i-3)*4096)}')
                self.tj = a(f'global_load_lds_dwordx4 v{TS+i}, {(sW1, sW1, sW2, sW2, sWO)[i]}')
            tjs.append(td)
        qds = [lambda q=q: setattr(self, 'wq_last', self.wqkv_dma1(WS_, vTM, q, 0)) for q in range(8)]
        ops += (tjs + qds) if self.opt.get('tfirst', 0) else (qds + tjs)
        for i, o in enumerate(ops[:npro]):
            o()
            if i == 9:
                self.prologue2()
        self.bgq = ops[npro:]
        a(f"""
        v_lshrrev_b32 {vA0}, 2, {vLANE}
        v_and_b32 {vA1}, 3, {vLANE}
        s_cmp_eq_u32 {sW}, 3
        s_cselect_b32 {sT2}, 1, 3
        v_and_b32 {vA2}, {sT2}, {vA1}
        s_movk_i32 {sT3}, 3584
        v_mul_u32_u24 {vA3}, {sT3}, {vA0}
        v_lshl_add_u32 {vA3}, {vA2}, 4, {vA3}
        s_mul_i32 {sT0}, {sG}, {32*3584}
        s_mul_i32 {sT1}, {sM}, 224
        s_add_u32 {sT0}, {sT0}, {sT1}
        s_lshl_b32 {sT1}, {sW}, 6
        s_add_u32 {sT0}, {sT0}, {sT1}
        v_add_u32 v{TS}, {sT0}, {vA3}
        v_lshlrev_b32 {vA4}, 10, {vA0}
        v_add_u32 v{TS+1}, {16*3584}, v{TS}
        v_lshl_add_u32 {vA4}, {vA1}, 4, {vA4}
        s_lshl_b32 {sT0}, {sCT}, 7
        s_lshl_b32 {sT1}, {sRH}, 6
        s_add_u32 {sT0}, {sT0}, {sT1}
        v_add_u32 {vA4}, {sT0}, {vA4}
        s_lshl_b32 {sT2}, {sW}, 1
        s_min_u32 {sT2}, {sT2}, 5
        s_mul_i32 {sT3}, {sG}, 7
        s_add_u32 {sT4}, {sT2}, {sT3}
        s_lshl_b32 {sT3}, {sT4}, 14
        v_add_u32 v{TS+2}, {sT3}, {vA4}
        v_add_u32 v{TS+3}, 16384, v{TS+2}
        s_lshl_b32 {sT5}, {sG}, 1
        s_add_u32 {sT5}, {sT5}, {sFT}
        s_lshl_b32 {sT3}, {sT5}, 14
        v_add_u32 v{TS+4}, {sT3}, {vA4}
        """)
        a(f"""
        v_and_b32 {vA1}, 15, {vLANE}
        v_lshl_add_u32 {vA1}, {vH}, 4, {vA1}
        v_lshlrev_b32 {vA1}, 4, {vA1}
        s_cmp_eq_u32 {sW}, 3
        s_cselect_b64 vcc, -1, 0
        s_cselect_b32 {sT2}, 10, 11
        v_cndmask_b32 {vA1}, {vL16}, {vA1}, vcc
        s_mul_i32 {sT0}, {sM}, 0x1C000
        s_lshl_b32 {sT1}, {sG}, {sT2}
        s_add_u32 {sT0}, {sT0}, {sT1}
        s_lshl_b32 {sT1}, {sW}, 15
        s_add_u32 {sT0}, {sT0}, {sT1}
        s_add_u32 {sT0}, {sT0}, {W1T}
        v_add_u32 {vBG0}, {sT0}, {vA1}
        s_sub_u32 {sT2}, {sT2}, 1
        s_lshl_b32 {sT2}, 1, {sT2}
        v_add_u32 v251, {sT2}, {vBG0}
        s_mul_i32 {sT0}, {sCT}, 0x38000
        s_lshl_b32 {sT1}, {sT4}, 11
        s_add_u32 {sT0}, {sT0}, {sT1}
        s_lshl_b32 {sT2}, {sRH}, 10
        s_add_u32 {sT0}, {sT0}, {sT2}
        s_add_u32 {sT0}, {sT0}, {W2T}
        v_add_u32 {vBG1}, {sT0}, {vL16}
        s_lshl_b32 {sT0}, {sCT}, 16
        s_lshl_b32 {sT1}, {sT5}, 11
        s_add_u32 {sT0}, {sT0}, {sT1}
        s_add_u32 {sT0}, {sT0}, {sT2}
        s_add_u32 {sT0}, {sT0}, {WOT}
        v_add_u32 {vBG2}, {sT0}, {vL16}
        """)
        a(f"""
        v_bfe_u32 {vA0}, {vT}, 1, 3
        v_lshlrev_b32 {vA1}, 7, {vT}
        v_add_u32 {vA1}, {sRING}, {vA1}
        """)
        for sp in range(4):
            a(f"""
            v_add_u32 {vA2}, {2*sp}, {vH}
            v_xor_b32 {vA2}, {vA2}, {vA0}
            v_lshl_add_u32 v{XR+sp}, {vA2}, 4, {vA1}
            """)
        self.pattern_ones(PO)
        a(f"""
        v_mov_b32 v{ON}, {sONE2}
        v_mov_b32 v{ON+1}, {sONE2}
        v_add_u32 {vCT}, {sW1K}, {vTR0}
        v_add_u32 {vK1}, {sW1K}, {vTR1}
        v_lshlrev_b32 {vA1}, 3, {vLANE}
        s_lshl_b32 {sT0}, {sW}, 9
        v_add_u32 {vA0}, {sT0}, {vA1}
        v_accvgpr_write_b32 a{AEXT+9}, 0
        v_accvgpr_write_b32 a{AEXT+11}, 0
        v_accvgpr_write_b32 a{AEXT+13}, 0
        v_accvgpr_write_b32 a{AEXT+14}, 0
        v_accvgpr_write_b32 a{AEXT+15}, 0
        """)
        self.stamp('issued')
        sh = {}

        def xread(c):
            for sp in range(4):
                xr[c] = a(f'ds_read_b128 {vr(X+4*(4*c+sp),4)}, v{XR+sp} offset:{(c%4)*4096}')

        def shread(c):
            b = AS + 8*(c % 2)
            for p in range(2):
                a(f'ds_read_b64_tr_b16 {ar(b+4*p,2)}, {vCT} offset:{(A0, A1)[p] + c*4096}')
                sh[c] = a(f'ds_read_b64_tr_b16 {ar(b+4*p+2,2)}, {vCT} offset:{(A0, A1)[p] + c*4096 + 512}')

        def shmm(c, p):
            a.wait(sh[c])
            a(f'{MF16} {vr(CS+4*p,4)}, {vr(PO,4)}, {ar(AS+8*(c%2)+4*p,4)}, {"0" if c == 0 else vr(CS+4*p,4)}')

        def stat(f, h):
            a.wait(xr[f // 4])
            z = f == 0 and h == 0
            x = vr(X+4*f+2*h, 2)
            a(f'{MF4} {vr(SQ,4)}, {x}, {x}, {"0" if z else vr(SQ,4)}')
            a(f'{MF4} {vr(SM,4)}, {vr(ON,2)}, {x}, {"0" if z else vr(SM,4)}')
        ev = {}

        def at(s, slot, f):
            ev.setdefault((s, slot), []).append(f)

        def arrive(c):
            if self.opt.get('fine'):
                self.stamp(f'e{c}')
            assert cnt[c] == (6 if c < 7 else 4)
            a.wait(gs[c])
            if self.opt.get('fine'):
                self.stamp(f'b{c}')
            xread(c)
            if c < 7:
                shread(c+1)
        for c in range(1, 8):
            at(4*c-3, 1, lambda c=c: arrive(c))
            at(4*c-3, 3, lambda: a('s_barrier'))
            if c < 7:
                at(4*c-2, 2, lambda c=c: shmm(c+1, 0))
                at(4*c-1, 0, lambda c=c: shmm(c+1, 1))
        at(0, 0, lambda: shmm(1, 0))
        at(0, 2, lambda: shmm(1, 1))

        def xw():
            a(f'v_mov_b32 v{CS+1}, v{CS+4}')
            self.xws = a(f'ds_write_b64 {vA0}, {vr(CS,2)} offset:{XCH}')
        at(24, 1, xw)
        ev[(25, 3)].insert(0, lambda: a.wait(self.xws))

        def xrd():
            for i in range(4):
                self.xrs = a(f'ds_read_b64 {vr(XT+2*i,2)}, {vA1} offset:{XCH + i*512}')
        at(25, 3, xrd)

        def xsum():
            a.wait(self.xrs)
            for i in range(1, 4):
                a(f'v_add_f32 v{XT}, v{XT}, v{XT+2*i}\nv_add_f32 v{XT+1}, v{XT+1}, v{XT+2*i+1}')
        at(27, 0, xsum)

        def extw(p):
            self.ext_w(f'v{XT+p}', vA2, XT+2)
            a(f'v_accvgpr_write_b32 a{AEXT+8+2*p}, {vA2}')
        at(27, 2, lambda: extw(0))
        at(28, 0, lambda: extw(1))
        qs = {}

        def qread(q):
            a.wait(self.wq_last)
            a(f'ds_read_b64_tr_b16 {ar(AQ+4*q,2)}, {vK1} offset:{q*4096}')
            qs[q] = a(f'ds_read_b64_tr_b16 {ar(AQ+4*q+2,2)}, {vK1} offset:{q*4096+512}')

        def qmm(q):
            a.wait(qs[q])
            a(f'{MF16} {vr(CS+8,4)}, {vr(PO,4)}, {ar(AQ+4*q,4)}, {"0" if q == 0 else vr(CS+8,4)}')
        for q in range(8):
            at(27 + q // 4, q % 4, lambda q=q: qread(q))
            at(30 + q // 4, (1, 1, 3, 3)[q % 4], lambda q=q: qmm(q))
        so = [f's_mov_b32 vcc_lo, 0x22222222\ns_mov_b32 vcc_hi, 0x22222222\nv_cndmask_b32 v{SM+1}, v{SQ}, v{SQ+1}, vcc',
              f's_mov_b32 vcc_lo, 0x44444444\ns_mov_b32 vcc_hi, 0x44444444\nv_cndmask_b32 v{SM+1}, v{SM+1}, v{SQ+2}, vcc',
              f's_mov_b32 vcc_lo, 0x88888888\ns_mov_b32 vcc_hi, 0x88888888\nv_cndmask_b32 v{SM+1}, v{SM+1}, v{SQ+3}, vcc']
        so += self.stats_ops(SM, False, summed=True)
        for k, sl in enumerate([(30, 1), (30, 2), (30, 3), (31, 0), (31, 1), (31, 2)]):
            for o in so[4*k:4*k+4]:
                at(sl[0], sl[1], lambda o=o: a(o))
        assert len(so) <= 24
        at(4, 0, lambda: a(f'v_readfirstlane_b32 {sEP}, {vEPO}\ns_add_u32 {sEP}, {sEP}, 0x9E3779B9'))

        def slot(s, k):
            cur[0] = s
            for f in ev.get((s, k), []):
                f()
            if k % 2:
                self.bg(1)
        a.wait(gs[0])
        self.stamp('first')
        xread(0)
        shread(0)
        shread(1)
        a('s_barrier')
        wl = {}
        for s in range(2):
            wl[s] = (self.trw(WB+8*s, s, 1), self.trw(WB+8*s+4, s, 2))
        for f in range(2):
            stat(f, 0)
            shmm(0, f)
            stat(f, 1)
        for s in range(32):
            b = WB + 8*(s % 3)
            b2 = WB + 8*((s+2) % 3)
            a.wait(xr[s // 4], wl[s][0])
            a(f'{MF32} {vr(accK,16)}, {vr(b,4)}, {vr(X+4*s,4)}, {"0" if s == 0 else vr(accK,16)}')
            if s + 2 < 32:
                w0 = self.trw(b2, s+2, 1)
            slot(s, 0)
            if s + 2 < 32:
                stat(s+2, 0)
            slot(s, 1)
            a.wait(wl[s][1])
            a(f'{MF32} {vr(accV,16)}, {vr(X+4*s,4)}, {vr(b+4,4)}, {"0" if s == 0 else vr(accV,16)}')
            if s + 2 < 32:
                wl[s+2] = (w0, self.trw(b2+4, s+2, 2))
            slot(s, 2)
            if s + 2 < 32:
                stat(s+2, 1)
            slot(s, 3)
            if s == 24:
                assert not self.bgq
        self.stamp('kv')
        a(f'v_lshrrev_b32 {vA0}, 1, {vA0}')
        a(f'ds_write_b32 {vA0}, v{CS+8} offset:{XCH+2048}')
        a('s_waitcnt lgkmcnt(0)')
        a('s_barrier')

    def res_load(self):
        a = self.a
        self.res_addr(vA0)
        for i in range(4):
            self.rs = a(f'global_load_dwordx2 {vr(RES+2*i,2)}, {vA0}, {sX} offset:{16*i}')

    def xaddr(self, inst):
        a = self.a
        a(f'''
        s_lshl_b32 {sT0}, {sG}, 2
        s_add_u32 {sT0}, {sT0}, {sW}
        s_lshl_b32 {sT1}, {sT0}, 7
        s_add_u32 {sT1}, {sT1}, {F_X + inst*0x2000}
        v_and_b32 {vA3}, 15, {vLANE}
        v_lshl_add_u32 {vA3}, {vA3}, 2, {sT1}
        s_lshl_b32 {sT0}, {sT0}, 12
        s_add_u32 {sT0}, {sT0}, {ST + inst*self.ss}
        v_lshlrev_b32 {vA2}, 3, {vT}
        v_lshl_add_u32 {vA2}, {vH}, 11, {vA2}
        v_add_u32 {vA2}, {sT0}, {vA2}
        s_lshl_b32 {sT1}, {sW}, 15
        s_add_u32 {sT2}, {sGB}, {sT1}
        s_add_u32 {sT2}, {sT2}, {XF + self.xo[inst] + 4096}
        v_add_u32 {vA1}, {sT2}, {vL16}
        ''')

    def xload(self, inst, statdst):
        a = self.a
        self.poll_loop(vA3)
        self.stamp('xflag')
        seqs = {}
        q = []
        SA = self.opt.get('sa', 7)
        for s in range(32):
            def op(s=s):
                if s % 8 == 0 and s > 0:
                    a(f'v_add_u32 {vA1}, 8192, {vA1}')
                seqs[s] = a(f'global_load_dwordx4 {vr(X+4*s,4)}, {vA1}, {sWS} offset:{(s%8)*1024-4096} sc1')
            q.append(op)
            if s == SA:
                for j in range(8):
                    q.append(lambda j=j: a(f'global_load_dwordx2 {vr(statdst+2*j,2)}, {vA2}, {sWS} offset:{j*256} sc1'))
        self.xq = q
        self.xnext(self.opt.get('il', 40))
        return None, seqs

    def xnext(self, n=1):
        for _ in range(n):
            if self.xq:
                self.xq.pop(0)()

    def p1a_l1(self):
        a = self.a
        WB = ACC + 48
        SD = 232
        accK, accV = ACC, ACC + 16
        wl = {}
        for s in range(2):
            b = WB + 8*(s % 3)
            wl[s] = (self.trw(b, s, 1), self.trw(b+4, s, 2))
        sl, xs = self.xload(2, SD)
        so = self.stats_ops(SD, False)
        SA = self.opt.get('sa', 7)
        for s in range(32):
            b = WB + 8*(s % 3)
            a.wait(xs[s], wl[s][1])
            ck = '0' if s == 0 else vr(accK, 16)
            cv = '0' if s == 0 else vr(accV, 16)
            a(f'{MF32} {vr(accK,16)}, {vr(b,4)}, {vr(X+4*s,4)}, {ck}')
            if s + 2 < 32:
                b2 = WB + 8*((s+2) % 3)
                w0 = self.trw(b2, s+2, 1)
            self.xnext(1)
            if s >= SA+1:
                for o in so[:2]:
                    a(o)
                so = so[2:]
            a(f'{MF32} {vr(accV,16)}, {vr(X+4*s,4)}, {vr(b+4,4)}, {cv}')
            if s % 2 == 0 or s < self.opt.get('il2', 8):
                self.xnext(1)
            if s + 2 < 32:
                wl[s+2] = (w0, self.trw(b2+4, s+2, 2))
        assert not so
        self.stamp('kv')
        a('s_barrier')

    def w1_bg(self, tiles):
        a = self.a

        def setup():
            a(f'''
            s_mul_i32 {sT0}, {sM}, 0x1C000
            s_add_u32 {sT0}, {sT0}, {W1T}
            v_add_u32 {vBG0}, {sT0}, {vL16}
            ''')

        self.bgq.append(setup)
        for c in tiles:
            for i0 in range(0, 8 if c < 3 else 4, 4):
                for i in range(i0, i0 + 4):
                    def op(c=c, i=i, i0=i0):
                        if c < 3:
                            a(f's_add_u32 m0, {sW8K}, {c*32768 + i0*1024}')
                        else:
                            a(f's_lshl_b32 {sT0}, {sW}, 12\ns_add_u32 m0, {sT0}, {A3}')
                        if i == i0:
                            a(f'v_add_u32 {vBG1}, m0, {vBG0}')
                        self.w1seq = a(f'global_load_lds_dwordx4 {vBG1}, {sWS} offset:{(i%4)*1024}')
                    self.bgq.append(op)

    def wreg_bg(self, base, ctstride, wstride, n, dst, lo=0):
        a = self.a

        def setup():
            a(f'''
            s_mul_i32 {sT0}, {sCT}, {ctstride}
            s_mul_i32 {sT1}, {sW}, {wstride}
            s_add_u32 {sT0}, {sT0}, {sT1}
            s_add_u32 {sT0}, {sT0}, {base + 4096 + lo*2048}
            s_lshl_b32 {sT1}, {sFT}, 10
            s_add_u32 {sT2}, {sT0}, {sT1}
            s_xor_b32 {sT1}, {sT1}, 1024
            s_add_u32 {sT3}, {sT0}, {sT1}
            v_add_u32 {vBG1}, {sT2}, {vL16}
            v_add_u32 {vBG2}, {sT3}, {vL16}
            ''')
        self.bgq.append(setup)
        for i in range(lo, n):
            for j in range(2):
                def op(i=i, j=j):
                    v = (vBG1, vBG2)[j]
                    if (i - lo) % 4 == 0 and i > lo:
                        a(f'v_add_u32 {v}, 8192, {v}')
                    self.wrseq = a(f'global_load_dwordx4 {dst(i, j)}, {v}, {sWS} offset:{((i-lo)%4)*2048-4096}' + (' nt' if self.opt.get('nt', 0) & 1 and base == W2T else ''))
                self.bgq.append(op)

    def p1b(self, l):
        a = self.a
        accK, accV, accQ = ACC, ACC + 16, ACC + 32
        WB = ACC + 48
        CS = 220
        RR = 228
        XCH = A1 + 2*4096
        a(f'{MF32} {vr(accK,16)}, {ar(AEXT+8,4)}, {vr(XE+2,4)}, {vr(accK,16)}')
        a(f'{MF32} {vr(accV,16)}, {vr(XE,4)}, {ar(AEXT+8,4)}, {vr(accV,16)}')
        a(f"""
        s_lshl_b32 {sT0}, {sW}, 7
        s_add_u32 {sT0}, {sT0}, {RB}
        v_lshl_add_u32 {vA0}, {vT}, 2, {sT0}
        v_lshl_add_u32 {vA1}, {vH}, 4, {sT0}
        ds_write_b32 {vA0}, {vR}
        """)
        wl = {}
        for s in range(2):
            wl[s] = self.trw(WB + 4*(s % 3), s, 0)
        for i in range(4):
            rr = a(f'ds_read_b128 {vr(RR+4*i,4)}, {vA1} offset:{32*i}')
        if l == 0:
            a(f'v_lshlrev_b32 {vA0}, 2, {vLANE}')
            for i in range(4):
                cq = a(f'ds_read_b32 v{CS+i}, {vA0} offset:{XCH+2048+256*i}')
        a(f"""
        s_lshl_b32 {sT1}, {sM}, 14
        s_add_u32 {sT0}, {sGB}, {sT1}
        s_lshl_b32 {sT1}, {sW}, 12
        s_add_u32 {sT0}, {sT0}, {sT1}
        s_add_u32 {sT0}, {sT0}, {KV + l*0x40000}
        v_add_u32 {vA1}, {sT0}, {vL16}
        s_add_u32 {sT1}, {sT1}, {LB + 8*4096}
        v_add_u32 {vA2}, {sT1}, {vL16}
        """)

        def pub(i):
            self.kvst = a(f'global_store_dwordx4 {vA1}, {vr(accK+4*i,4)}, {sWS} offset:{i*1024} sc1')

        def publ(i):
            a(f'ds_write_b128 {vA2}, {vr(accK+4*i,4)} offset:{i*1024}')
        ep = []
        for hh in range(2):
            for j in range(8*hh, 8*hh+8):
                ep.append(f'v_mul_f32 v{accK+j}, v{accK+j}, {vR}')
            for j in range(4*hh, 4*hh+4):
                ep.append(f'v_cvt_pk_bf16_f32 v{accK+j}, v{accK+2*j}, v{accK+2*j+1}')
            ep.append(('call', lambda i=hh: pub(i)))
        ep.append(('wait', rr))
        for hh in range(2):
            for j in range(8*hh, 8*hh+8):
                ep.append(f'v_mul_f32 v{accV+j}, v{accV+j}, v{RR+j}')
            for j in range(4*hh, 4*hh+4):
                ep.append(f'v_cvt_pk_bf16_f32 v{accK+8+j}, v{accV+2*j}, v{accV+2*j+1}')
            ep.append(('call', lambda i=hh: pub(2+i)))
        for i in range(4):
            ep.append(('call', lambda i=i: publ(i)))
        hooks = {}
        if l == 0:
            ep.append(('wait', cq))
            ep += [f'v_add_f32 v{CS}, v{CS}, v{CS+1}', f'v_add_f32 v{CS+2}, v{CS+2}, v{CS+3}', f'v_add_f32 v{CS}, v{CS}, v{CS+2}']
            ep.append(('call', lambda: self.ext_w(f'v{CS}', f'v{CS+1}', CS+2)))
            ep.append(f'v_accvgpr_write_b32 a{AEXT+12}, v{CS+1}')
            TQ = self.opt.get('tq', 14)

            def tread():
                a.wait(self.tj)
                for i in range(5):
                    off = (A0 + i*4096) if i < 3 else (A1 + (i-3)*4096)
                    a(f'ds_read_b64_tr_b16 {ar(4*i,2)}, {vK0} offset:{off}')
                    self.tl = a(f'ds_read_b64_tr_b16 {ar(4*i+2,2)}, {vK0} offset:{off+512}')

            def tstore():
                a.wait(self.tl)
                a(f"""
                global_store_dwordx4 {vBG0}, {ar(0,4)}, {sWS} sc1
                global_store_dwordx4 v251, {ar(4,4)}, {sWS} sc1
                global_store_dwordx4 {vBG1}, {ar(8,4)}, {sWS} sc1
                global_store_dwordx4 {vBG1}, {ar(12,4)}, {sWS} offset:2048 sc1
                """)
                self.tst = a(f'global_store_dwordx4 {vBG2}, {ar(16,4)}, {sWS} sc1')
            hooks[TQ] = tread
            hooks[TQ+4] = tstore

        def kvflag():
            a(f"""
            s_lshl_b32 {sT0}, {sG}, 4
            s_add_u32 {sT0}, {sT0}, {sM}
            s_lshl_b32 {sT0}, {sT0}, 2
            s_add_u32 {sT0}, {sT0}, {sW}
            s_lshl_b32 {sT0}, {sT0}, 7
            s_add_u32 {sT0}, {sT0}, {F_KV + l*0x20000}
            v_mov_b32 {vA3}, {sT0}
            """)
            a.wait(self.kvst)
            self.flag_store(vA3, slow=True)
        per = 6
        for s in range(32):
            b = WB + 4*(s % 3)
            a.wait(wl[s])
            a(f'{MF32} {vr(accQ,16)}, {vr(b,4)}, {vr(X+4*s,4)}, {"0" if s == 0 else vr(accQ,16)}')
            if s + 2 < 32:
                wl[s+2] = self.trw(WB + 4*((s+2) % 3), s+2, 0)
            if s >= 1:
                for o in ep[:per]:
                    self.do(o)
                ep = ep[per:]
            if s in hooks:
                hooks[s]()
        assert not ep
        a(f'{MF32} {vr(accQ,16)}, {ar(AEXT+12,4)}, {vr(XE+2,4)}, {vr(accQ,16)}')
        a(f'v_mul_f32 {vA1}, {f2h(0.25*math.log2(math.e))}, {vR}')
        a(f's_lshl_b32 {sT0}, {sW}, 11\ns_add_u32 {sT0}, {sT0}, {QX}\nv_add_u32 {vA2}, {sT0}, {vL16}')
        if self.opt.get('kf', 0) == 0:
            kvflag()
        for hh in range(2):
            for j in range(8*hh, 8*hh+8):
                a(f'v_mul_f32 v{accQ+j}, v{accQ+j}, {vA1}')
            for j in range(4*hh, 4*hh+4):
                a(f'v_cvt_pk_bf16_f32 v{accV+j}, v{accQ+2*j}, v{accQ+2*j+1}')
            a(f'ds_write_b128 {vA2}, {vr(accV+4*hh,4)} offset:{hh*1024}')
        if self.opt.get('kf', 0) == 1:
            kvflag()
        self.stamp('q')

    def wt_flag(self):
        a = self.a
        a(f"""
        s_lshl_b32 {sT0}, {sM}, 4
        s_add_u32 {sT0}, {sT0}, {sG}
        s_lshl_b32 {sT0}, {sT0}, 7
        s_lshl_b32 {sT1}, {sW}, 2
        s_add_u32 {sT0}, {sT0}, {sT1}
        s_add_u32 {sT0}, {sT0}, {F_WT}
        v_mov_b32 v230, {sT0}
        s_and_b32 {sT0}, {sEP}, -8
        s_or_b32 {sT0}, {sT0}, {sXCC}
        """)
        a.wait(self.tst)
        self.flag_store('v230', slow=True, val=sT0)

    def wt_issue(self):
        a = self.a
        a(f"""
        s_lshl_b32 {sT0}, {sCT}, 11
        s_lshl_b32 {sT1}, {sG}, 7
        v_and_b32 v231, 15, {vLANE}
        v_lshlrev_b32 v230, 7, v231
        v_bfe_u32 v232, {vLANE}, 4, 1
        v_lshl_add_u32 v230, v232, 14, v230
        v_add_u32 v230, {sT0}, v230
        v_lshl_add_u32 v231, v231, 11, {sT1}
        v_cndmask_b32 v230, v230, v231, {sHM}
        v_add_u32 v230, {F_WT}, v230
        """)
        self.wtp = a(f'global_load_dwordx4 v[232:235], v230, {sWS} sc1')

    def wt_check(self):
        a = self.a
        ok = a.newlabel('wok')
        lp = a.newlabel('wlp')
        a.wait(self.wtp)
        a(f's_mov_b32 {sCNT}, 0')
        a.label(lp)
        a(f"""
        v_xor_b32 v231, {sEP}, v232
        v_xor_b32 v233, {sEP}, v233
        v_xor_b32 v234, {sEP}, v234
        v_xor_b32 v235, {sEP}, v235
        v_or3_b32 v231, v231, v233, v234
        v_or_b32 v231, v231, v235
        v_cmp_le_u32 vcc, 8, v231
        v_and_b32 v232, 7, v232
        s_add_u32 {sCNT}, {sCNT}, 1
        s_cmp_eq_u64 vcc, 0
        s_cbranch_scc1 {ok}
        """)
        sv = (a.vm_done, a.lg_done)
        a(f'global_load_dwordx4 v[232:235], v230, {sWS} sc1', count=False)
        a(f"""
        s_waitcnt vmcnt(0)
        s_cmp_lt_u32 {sCNT}, {sLIM}
        s_cbranch_scc1 {lp}
        s_mov_b32 {sLIM}, 1
        """)
        a.vm_done, a.lg_done = sv
        a.label(ok)
        a(f"""
        v_cmp_ne_u32 vcc, {sXCC}, v232
        s_nop 0
        s_cmp_eq_u32 vcc_hi, 0
        s_cselect_b32 {sMODE}, 1, 0
        """)

    def halo_addr(self, l):
        a = self.a
        a(f'''
        s_add_u32 {sT2}, {sG}, {sTT}
        s_max_u32 {sT2}, {sT2}, 2
        s_sub_u32 {sT2}, {sT2}, 2
        s_lshl_b32 {sT0}, {sT2}, 4
        s_add_u32 {sT0}, {sT0}, {sM}
        s_lshl_b32 {sT0}, {sT0}, 2
        s_lshl_b32 {sT1}, {sFT}, 1
        s_add_u32 {sT0}, {sT0}, {sT1}
        s_lshl_b32 {sT0}, {sT0}, 7
        s_add_u32 {sT0}, {sT0}, {F_KV + l*0x20000}
        v_and_b32 {vA3}, 1, {vLANE}
        v_lshl_add_u32 {vA3}, {vA3}, 7, {sT0}
        s_lshl_b32 {sT0}, {sT2}, 21
        s_lshl_b32 {sT1}, {sM}, 14
        s_add_u32 {sT0}, {sT0}, {sT1}
        s_lshl_b32 {sT1}, {sFT}, 13
        s_add_u32 {sT0}, {sT0}, {sT1}
        s_add_u32 {sT0}, {sT0}, {G0 + KV + l*0x40000}
        v_add_u32 {vA1}, {sT0}, {vL16}
        v_add_u32 {vA2}, 4096, {vA1}
        ''')

    def halo_dma(self):
        a = self.a
        a(f's_add_u32 m0, {sW8K}, {LB}\ns_nop 0')
        for i in range(4):
            a(f'global_load_lds_dwordx4 {vA1}, {sWS} offset:{i*1024} sc1')
        a(f's_add_u32 m0, {sW8K}, {LB+4096}\ns_nop 0')
        for i in range(4):
            seq = a(f'global_load_lds_dwordx4 {vA2}, {sWS} offset:{i*1024} sc1')
        return seq

    def prefetch_out(self):
        a = self.a
        D = vr(96, 4)
        q = []

        def s1():
            a(f'''
            s_lshl_b32 {sT1}, {sM}, 11
            s_add_u32 {sT0}, {sGB}, {sT1}
            s_lshl_b32 {sT1}, {sW}, 15
            s_add_u32 {sT0}, {sT0}, {sT1}
            s_add_u32 {sT0}, {sT0}, {OF}
            v_add_u32 v251, {sT0}, {vL16}
            s_and_b32 {sT1}, {sTQ}, 3
            s_lshl_b32 {sT1}, {sT1}, 15
            s_add_u32 {sT0}, {sGB}, {sT1}
            s_lshl_b32 {sT1}, {sPQ}, 11
            s_add_u32 {sT0}, {sT0}, {sT1}
            s_add_u32 {sT0}, {sT0}, {XF}
            v_add_u32 v252, {sT0}, {vL16}
            global_store_dwordx4 v251, {D}, {sWS} sc1
            global_store_dwordx4 v251, {D}, {sWS} offset:1024 sc1
            ''')

        def s2():
            a(f'''
            global_store_dwordx4 v252, {D}, {sWS} sc1
            global_store_dwordx4 v252, {D}, {sWS} offset:1024 sc1
            s_lshl_b32 {sT0}, {sTQ}, 12
            s_lshl_b32 {sT1}, {sPQ}, 8
            s_add_u32 {sT0}, {sT0}, {sT1}
            s_add_u32 {sT0}, {sT0}, {ST}
            v_lshl_add_u32 v251, {vLANE}, 2, {sT0}
            global_store_dword v251, v251, {sWS} sc1
            s_mul_i32 {sT1}, {sW}, {112*1024}
            s_add_u32 {sT0}, {sGB}, {sT1}
            s_mul_i32 {sT1}, {sM}, {7*1024}
            s_add_u32 {sT0}, {sT0}, {sT1}
            s_add_u32 {sT0}, {sT0}, {HF+4096}
            v_add_u32 v250, {sT0}, {vL16}
            ''')
        q += [s1, s2]
        for i in range(7):
            q.append(lambda i=i: a(f'global_store_dwordx4 v250, {D}, {sWS} offset:{i*1024-4096} sc1'))
        return q

    def attention(self, l):
        a = self.a
        Q = {'a': 96, 'b': 100}
        NM = {'a': 104, 'b': 120}
        S = [136, 152]
        O = {'a': 168, 'b': 184}
        KB = [200, 204, 208]
        VB = 212
        MX = {'a': 'v220', 'b': 'v221'}
        DL = {'a': 'v222', 'b': 'v223'}
        vBIG = 'v224'
        vK = {'a': 'v225', 'b': 'v226'}
        vV = {'a': 'v227', 'b': 'v228'}
        m = lambda j: f's[{MASK0+2*j}:{MASK0+2*j+1}]'
        self.halo_addr(l)
        hp = self.poll_issue(vA3)
        a(f'''
        s_lshl_b32 {sT0}, {sTT}, 12
        s_lshl_b32 {sT1}, {sFT}, 10
        s_add_u32 {sT2}, {sT0}, {sT1}
        s_add_u32 {sT2}, {sT2}, {LB}
        v_add_u32 {vK['a']}, {sT2}, {vL16}
        s_sub_u32 {sT3}, {sT1}, {sT0}
        s_add_u32 {sT3}, {sT3}, {LB + 3*4096}
        v_add_u32 {vK['b']}, {sT3}, {vL16}
        s_lshl_b32 {sT1}, {sFT}, 8
        s_add_u32 {sT2}, {sT0}, {sT1}
        s_add_u32 {sT2}, {sT2}, {LB + 2048}
        v_add_u32 {vV['a']}, {sT2}, {vL16}
        s_sub_u32 {sT3}, {sT1}, {sT0}
        s_add_u32 {sT3}, {sT3}, {LB + 3*4096 + 2048}
        v_add_u32 {vV['b']}, {sT3}, {vL16}
        s_lshl_b32 {sT0}, {sTT}, 11
        s_lshl_b32 {sT1}, {sFT}, 10
        s_add_u32 {sT2}, {sT0}, {sT1}
        s_add_u32 {sT2}, {sT2}, {QX}
        v_add_u32 {vA0}, {sT2}, {vL16}
        s_sub_u32 {sT3}, {sT1}, {sT0}
        s_add_u32 {sT3}, {sT3}, {QX + 3*2048}
        v_add_u32 v229, {sT3}, {vL16}
        v_mov_b32 {vBIG}, {hex(BIGNEG)}
        ''')
        for j in range(16):
            a(f'v_cndmask_b32 v{NM["a"]+j}, {vBIG}, 0, {m(j)}')
        for j in range(8):
            a(f'v_mov_b32 v{VB+j}, {sONE2}')
        a.wait_all(vm=False)
        a('s_barrier')
        a(f'ds_read_b128 {vr(Q["a"],4)}, {vA0}')
        qs = a(f'ds_read_b128 {vr(Q["b"],4)}, v229')

        def kread(st, buf):
            return a(f'ds_read_b128 {vr(buf,4)}, {vK[st[0]]} offset:{st[1]*4096}')

        def vread(st):
            a(f's_mov_b64 exec, {sLO16}')
            a(f'ds_read_b128 {vr(VB,4)}, {vV[st[0]]} offset:{st[1]*4096}')
            r = a(f'ds_read_b128 {vr(VB+4,4)}, {vV[st[0]]} offset:{st[1]*4096+1024}')
            a('s_mov_b64 exec, -1')
            return r

        def fix(st):
            s, i = st
            if (s == 'a' and i in (7, 6, 3, 2)) or (s == 'b' and i in (5, 4, 1, 0)):
                f = a.newlabel('fix')
                r = a.newlabel('fixr')
                a(f's_cmp_eq_i32 {sIA if s == "a" else sIB}, {i}\ns_cbranch_scc1 {f}')
                a.label(r)
                self.tail.append(f'{f}:\n    s_nop 15\n' + ''.join(f'    v_mov_b32 v{NM[s]+j}, {vBIG}\n' for j in range(16)) + f'    s_nop 3\n    s_branch {r}')

        def qk(st, sb, kb, C):
            a(f'{MF32} {vr(sb,16)}, {vr(kb,4)}, {vr(Q[st[0]],4)}, {C}')

        def pass1(stages, local, hook=None):
            n = len(stages)
            ks = {}
            for k in range(min(3, n)):
                ks[k] = kread(stages[k], KB[k % 3])
            acc = MX if local else DL
            first = {'a': local, 'b': local}

            def issue(k):
                st = stages[k]
                sb = S[k % 2]
                if local:
                    C = vr(NM['a'], 16) if st[1] == 8 else '0'
                else:
                    fix(st)
                    C = vr(NM[st[0]], 16)
                    if st[1] == 0:
                        for j in range(16):
                            a(f'v_cndmask_b32 v{sb+j}, v{NM[st[0]]+j}, {vBIG}, {m(j)}')
                        C = vr(sb, 16)
                a.wait(ks[k])
                qk(st, sb, KB[k % 3], C)
                if k + 3 < n:
                    ks[k+3] = kread(stages[k+3], KB[k % 3])
            issue(0)
            for k in range(n):
                if k + 1 < n:
                    issue(k + 1)
                if hook:
                    hook(k)
                s = S[k % 2]
                mx = acc[stages[k][0]]
                if first[stages[k][0]]:
                    first[stages[k][0]] = False
                    a(f'v_max3_f32 {mx}, v{s}, v{s+1}, v{s+2}')
                    for j in range(3, 15, 2):
                        a(f'v_max3_f32 {mx}, v{s+j}, v{s+j+1}, {mx}')
                    a(f'v_max_f32 {mx}, v{s+15}, {mx}')
                else:
                    for j in range(0, 16, 2):
                        a(f'v_max3_f32 {mx}, v{s+j}, v{s+j+1}, {mx}')
            for s_ in 'ab':
                mx = acc[s_]
                a(f'v_mov_b32 {vA4}, {mx}')
                a(f'v_permlane32_swap_b32 {mx}, {vA4}')
                a(f'v_max_f32 {mx}, {mx}, {vA4}')

        def pass2(stages, local, hook=None, pre=None):
            n = len(stages)
            ks = {}
            vs = {}
            first = {'a': local, 'b': local}
            ks[0] = kread(stages[0], KB[0])
            ks[1] = kread(stages[1], KB[1])
            vs[0] = vread(stages[0])
            if pre:
                pre()

            def issue(k):
                st = stages[k]
                sb = S[k % 2]
                if not local:
                    fix(st)
                C = vr(NM[st[0]], 16)
                if st[1] == 8:
                    for j in range(16):
                        a(f'v_cndmask_b32 v{sb+j}, {vBIG}, {MX[st[0]]}, {m(j)}')
                    C = vr(sb, 16)
                elif st[1] == 0:
                    for j in range(16):
                        a(f'v_cndmask_b32 v{sb+j}, v{NM[st[0]]+j}, {vBIG}, {m(j)}')
                    C = vr(sb, 16)
                a.wait(ks[k])
                qk(st, sb, KB[k % 2], C)
                if k + 2 < n:
                    ks[k+2] = kread(stages[k+2], KB[k % 2])

            def pv(k, half):
                st = stages[k]
                o = O[st[0]]
                C = vr(o, 16)
                if half == 0:
                    a.wait(vs[k])
                    if first[st[0]]:
                        first[st[0]] = False
                        C = '0'
                a(f'{MF32} {vr(o,16)}, {vr(VB+4*half,4)}, {vr(S[k%2]+4*half,4)}, {C}')
            issue(0)
            for k in range(n):
                s = S[k % 2]
                ops = []
                for j in range(16):
                    ops.append(f'v_exp_f32 v{s+j}, v{s+j}')
                    if j % 2 == 1 and j >= 3:
                        jj = (j - 3) // 2
                        ops.append(f'v_cvt_pk_bf16_f32 v{s+jj}, v{s+2*jj}, v{s+2*jj+1}')
                ops.append(f'v_cvt_pk_bf16_f32 v{s+7}, v{s+14}, v{s+15}')
                for i, o in enumerate(ops):
                    if k > 0 and i == 0:
                        pv(k-1, 0)
                    if k > 0 and i == 4:
                        pv(k-1, 1)
                        vs[k] = vread(stages[k])
                    if i == 9 and k + 1 < n:
                        issue(k + 1)
                    if hook and i in (14, 19):
                        hook(k)
                    a(o)
            pv(n-1, 0)
            pv(n-1, 1)

        loc = [('a', 8), ('b', 8), ('b', 7), ('b', 6)]
        hal = [('a', 7), ('b', 5), ('a', 6), ('b', 4), ('a', 5), ('b', 3), ('a', 4), ('b', 2), ('a', 3), ('b', 1), ('a', 2), ('b', 0), ('a', 1), ('a', 0)]
        a.wait(qs)
        pass1(loc, True)
        if l == 0:
            self.wt_flag()
        for s_ in 'ab':
            a(f'v_sub_f32 {MX[s_]}, 0, {MX[s_]}')
        late = a.newlabel('hlate')
        a.wait(hp)
        self.cmpflag(0)
        a(f's_mov_b32 {sHD}, 0\ns_cmp_eq_u64 vcc, 0\ns_cbranch_scc0 {late}')
        sv = a.vm
        self.halo_dma()
        a.vm = sv
        a(f's_mov_b32 {sHD}, 1')
        a.label(late)

        def setnm():
            for s_ in 'ba':
                for j in range(16):
                    a(f'v_mov_b32 v{NM[s_]+j}, {MX[s_]}')
        pass2(loc, True, pre=setnm)
        self.stamp('attl')
        if l == 0:
            self.wt_issue()
        done = a.newlabel('hdone')
        a(f's_cmp_eq_u32 {sHD}, 1\ns_cbranch_scc1 {done}')
        self.poll_loop(vA3)
        sv = a.vm
        self.halo_dma()
        a.vm = sv
        a.label(done)
        a(f'v_mov_b32 {DL["a"]}, 0\nv_mov_b32 {DL["b"]}, 0')
        a.wait_all()
        a('s_barrier')
        self.stamp('halo')
        if l == 0:
            self.wt_check()
            self.stamp('wt')
            self.bgq.append(self.res_load)
        self.wreg_bg(WOT, 0x10000, 0x4000, 8, lambda i, j: vr(X+8*i+4*j, 4))
        self.w1_bg((0, 1, 2, 3))
        if l == 0:
            self.wreg_bg(W2T, 0x38000, 28*2048, self.opt.get('w2a', 4), lambda i, j: ar(8*i+4*j, 4))
        if l == 0 and self.opt.get('pf', 1):
            pf = self.prefetch_out()
            st = len(self.bgq) // len(pf)
            for i, f in enumerate(pf):
                self.bgq.insert(i*(st+1), f)
        nb = len(self.bgq)
        pass1(hal, False, hook=lambda k: self.bg(1))
        self.stamp('att1')

        def rescale():
            for s_ in 'ab':
                a(f'v_sub_f32 {MX[s_]}, {MX[s_]}, {DL[s_]}')
                a(f'v_sub_f32 {DL[s_]}, 0, {DL[s_]}')
                a(f'v_exp_f32 {DL[s_]}, {DL[s_]}')
            setnm()
            for s_ in 'ab':
                for j in range(9):
                    a(f'v_mul_f32 v{O[s_]+j}, v{O[s_]+j}, {DL[s_]}')
        per = -(-len(self.bgq) // 26)
        pass2(hal, False, hook=lambda k: self.bg(per), pre=rescale)
        assert not self.bgq
        a(f'''
        s_lshl_b32 {sT1}, {sM}, 11
        s_add_u32 {sT0}, {sGB}, {sT1}
        s_lshl_b32 {sT1}, {sFT}, 10
        s_add_u32 {sT0}, {sT0}, {sT1}
        s_add_u32 {sT0}, {sT0}, {OF + l*self.os}
        s_lshl_b32 {sT1}, {sTT}, 15
        s_add_u32 {sT2}, {sT0}, {sT1}
        v_add_u32 {vA1}, {sT2}, {vL16}
        s_sub_u32 {sT2}, {sT0}, {sT1}
        s_add_u32 {sT2}, {sT2}, {3*32768}
        v_add_u32 {vA2}, {sT2}, {vL16}
        ''')
        for s_, va in (('b', vA2), ('a', vA1)):
            o = O[s_]
            a(f'v_rcp_f32 {vA0}, v{o+8}')
            for j in range(8):
                a(f'v_mul_f32 v{o+j}, v{o+j}, {vA0}')
            for j in range(4):
                a(f'v_cvt_pk_bf16_f32 v{o+j}, v{o+2*j}, v{o+2*j+1}')
            st = self.stores([f'global_store_dwordx4 {va}, {vr(o,4)}, {sWS}'])
        a(f'''
        s_lshl_b32 {sT0}, {sG}, 2
        s_lshr_b32 {sT1}, {sM}, 2
        s_add_u32 {sT0}, {sT0}, {sT1}
        s_lshl_b32 {sT0}, {sT0}, 7
        s_and_b32 {sT1}, {sM}, 3
        s_lshl_b32 {sT1}, {sT1}, 2
        s_add_u32 {sT1}, {sT1}, {sW}
        s_lshl_b32 {sT1}, {sT1}, 2
        s_add_u32 {sT0}, {sT0}, {sT1}
        s_add_u32 {sT0}, {sT0}, {F_O + l*0x4000}
        v_mov_b32 {vA3}, {sT0}
        ''')
        self.ost = st

    def unpack_res(self, dst):
        a = self.a
        for i in range(8):
            a(f'v_lshlrev_b32 v{dst+2*i}, 16, v{RES+i}')
            a(f'v_and_b32 v{dst+2*i+1}, 0xffff0000, v{RES+i}')

    def act_addr(self, tile_stride, base_lines, bias):
        a = self.a
        a(base_lines)
        a(f'''
        s_mul_i32 {sT1}, {sTT}, {tile_stride}
        s_add_u32 {sT2}, {sT0}, {sT1}
        s_sub_u32 {sT1}, {tile_stride}, {sT1}
        s_add_u32 {sT3}, {sT0}, {sT1}
        s_add_u32 {sT2}, {sT2}, {bias}
        s_add_u32 {sT3}, {sT3}, {bias}
        v_add_u32 {vA1}, {sT2}, {vL16}
        v_add_u32 {vA2}, {sT3}, {vL16}
        ''')

    def reduce_addr(self, RA):
        a = self.a
        for i in range(4):
            a(f'''
            s_xor_b32 {sT0}, {sW}, {i}
            s_mul_i32 {sT0}, {sT0}, {3*4096}
            s_add_u32 {sT0}, {sT0}, {LB + max(i-1, 0)*4096}
            v_add_u32 v{RA+i}, {sT0}, {vL16}
            ''')

    def reduce64(self, TMP, RA, late):
        a = self.a
        w = [f'ds_write_b128 v{RA+i}, {vr(ACC+16*i+4*j,4)} offset:{j*1024}' for i in range(1, 4) for j in range(4)]
        k = 0
        while w or late:
            if late:
                a(late.pop(0))
            for _ in range(2 if k % 2 else 1):
                if w:
                    a(w.pop(0))
            k += 1
        a.wait_all(vm=False)
        a('s_barrier')
        rd = []
        for i in range(12):
            rd.append(a(f'ds_read_b128 {vr(TMP+4*i,4)}, v{RA} offset:{(i%3)*4096+(i//3)*1024}'))
        for q in range(4):
            for i in range(3):
                a.wait(rd[3*q+i])
                for j in range(4):
                    r = ACC + q*4 + j
                    a(f'v_add_f32 v{r}, v{r}, v{TMP+4*(3*q+i)+j}')
            for i in (2*q, 2*q+1):
                a(f'v_cvt_pk_bf16_f32 v{RES+i}, v{ACC+2*i}, v{ACC+2*i+1}')

    def xpub_addr(self, inst, PA):
        a = self.a
        a(f'''
        s_and_b32 {sT1}, {sTQ}, 3
        s_lshl_b32 {sT1}, {sT1}, 15
        s_add_u32 {sT0}, {sGB}, {sT1}
        s_lshl_b32 {sT1}, {sPQ}, 11
        s_add_u32 {sT0}, {sT0}, {sT1}
        s_add_u32 {sT0}, {sT0}, {XF + self.xo[inst]}
        v_add_u32 v{PA}, {sT0}, {vL16}
        s_lshl_b32 {sT0}, {sTQ}, 12
        s_lshl_b32 {sT1}, {sPQ}, 8
        s_add_u32 {sT0}, {sT0}, {sT1}
        s_add_u32 {sT0}, {sT0}, {ST + inst*self.ss}
        v_lshlrev_b32 v{PA+1}, 3, {vT}
        v_lshl_add_u32 v{PA+1}, {vH}, 2, v{PA+1}
        v_add_u32 v{PA+1}, {sT0}, v{PA+1}
        s_lshl_b32 {sT0}, {sTQ}, 7
        s_lshl_b32 {sT1}, {sPQ}, 2
        s_add_u32 {sT0}, {sT0}, {sT1}
        s_add_u32 {sT0}, {sT0}, {F_X + inst*0x2000}
        v_mov_b32 v{PA+2}, {sT0}
        ''')

    def x_publish(self, inst, PA):
        a = self.a
        self.stores([f'global_store_dwordx4 v{PA}, {vr(RES,4)}, {sWS}',
                     f'global_store_dwordx4 v{PA}, {vr(RES+4,4)}, {sWS} offset:1024'])
        s, q = vA0, vA4
        a(f'v_mov_b32 {s}, 0\nv_mov_b32 {q}, 0')
        for i in range(8):
            a(f'v_dot2_f32_bf16 {s}, v{RES+i}, {sONE2}, {s}')
            a(f'v_dot2_f32_bf16 {q}, v{RES+i}, v{RES+i}, {q}')
        a(f'v_permlane32_swap_b32 {s}, {q}\ns_nop 1\nv_add_f32 {s}, {s}, {q}')
        st = self.stores([f'global_store_dword v{PA+1}, {s}, {sWS}'])
        self.xaddr(inst)
        a.wait(st)
        self.flag_store(f'v{PA+2}')

    def p2(self, l):
        a = self.a
        RA, PA = 228, 232
        AB = 96
        if l == 0:
            a.wait(self.rs)
        self.act_addr(0x8000, f'''
        s_lshl_b32 {sT1}, {sRH}, 16
        s_add_u32 {sT0}, {sGB}, {sT1}
        s_add_u32 {sT0}, {sT0}, {sW8K}
        s_add_u32 {sT0}, {sT0}, {OF + l*self.os}
        ''', 4096)
        a(f'''
        s_lshl_b32 {sT0}, {sG}, 2
        s_add_u32 {sT0}, {sT0}, {sW}
        s_lshl_b32 {sT0}, {sT0}, 7
        s_add_u32 {sT0}, {sT0}, {F_O + l*0x4000}
        v_and_b32 {vA0}, 15, {vLANE}
        v_lshl_add_u32 {vA0}, {vA0}, 2, {sT0}
        ''')
        self.reduce_addr(RA)
        self.xpub_addr(2*l+1, PA)
        a.wait(self.ost)
        self.flag_store(vA3)
        self.stamp('att2')
        self.unpack_res(ACC)
        self.poll_loop(vA0)
        self.stamp('oflag')
        seqs = {}
        for k in range(8):
            b = AB + 8*k
            s0 = a(f'global_load_dwordx4 {vr(b,4)}, {vA1}, {sWS} offset:{k*1024-4096} sc1')
            s1 = a(f'global_load_dwordx4 {vr(b+4,4)}, {vA2}, {sWS} offset:{k*1024-4096} sc1')
            seqs[k] = (s0, s1)
        if l == 0:
            self.wreg_bg(W2T, 0x38000, 28*2048, self.opt.get('w2b', 12), lambda i, j: ar(8*i+4*j, 4), lo=self.opt.get('w2a', 4))
            self.bg(100)
        wreg = lambda k, j: vr(X + 8*k + 4*j, 4)
        late = []
        for k in range(8):
            b = AB + 8*k
            c = lambda i: '0' if k == 0 else vr(ACC+16*i, 16)
            a.wait(seqs[k][0])
            a(f'{MF32} {vr(ACC+16,16)}, {wreg(k,1)}, {vr(b,4)}, {c(1)}')
            late.append(f'{MF32} {vr(ACC,16)}, {wreg(k,0)}, {vr(b,4)}, {vr(ACC,16)}')
            a.wait(seqs[k][1])
            a(f'{MF32} {vr(ACC+32,16)}, {wreg(k,0)}, {vr(b+4,4)}, {c(2)}')
            a(f'{MF32} {vr(ACC+48,16)}, {wreg(k,1)}, {vr(b+4,4)}, {c(3)}')
        self.stamp('p2mm')
        a('s_barrier')
        a(late.pop(0))
        a(late.pop(0))
        self.reduce64(X, RA, late)
        self.stamp('p2red')
        self.x_publish(2*l+1, PA)
        self.stamp('p2')

    def p3(self, l):
        a = self.a
        WA = ['v232', 'v233']
        SD = 236
        WB = ACC + 48
        GT = 236
        vHA = 'v234'
        vHF = 'v235'

        def wr(dst, s, c):
            if c < 2:
                return a(f'ds_read_b128 {vr(dst,4)}, {vL16} offset:{c*32768 + s*1024}')
            if c == 2:
                return a(f'ds_read_b128 {vr(dst,4)}, {WA[0]} offset:{s*1024}')
            return a(f'ds_read_b128 {vr(dst,4)}, {WA[1]} offset:{s*512}')
        a(f'''
        v_add_u32 {WA[0]}, {A2}, {vL16}
        v_and_b32 {vA0}, 15, {vLANE}
        v_lshl_add_u32 {vA0}, {vH}, 4, {vA0}
        v_lshlrev_b32 {vA0}, 4, {vA0}
        v_add_u32 {WA[1]}, {A3}, {vA0}
        s_mul_i32 {sT1}, {sW}, {112*1024}
        s_add_u32 {sT0}, {sGB}, {sT1}
        s_mul_i32 {sT1}, {sM}, {7*1024}
        s_add_u32 {sT0}, {sT0}, {sT1}
        s_add_u32 {sT0}, {sT0}, {HF + l*self.hs + 4096}
        v_add_u32 {vHA}, {sT0}, {vL16}
        s_lshl_b32 {sT0}, {sG}, 1
        s_add_u32 {sT0}, {sT0}, {sTT}
        s_lshl_b32 {sT0}, {sT0}, 2
        s_lshr_b32 {sT1}, {sM}, 2
        s_add_u32 {sT0}, {sT0}, {sT1}
        s_lshl_b32 {sT0}, {sT0}, 7
        s_and_b32 {sT1}, {sM}, 3
        s_lshl_b32 {sT1}, {sT1}, 1
        s_add_u32 {sT1}, {sT1}, {sFT}
        s_lshl_b32 {sT1}, {sT1}, 2
        s_add_u32 {sT0}, {sT0}, {sT1}
        s_add_u32 {sT0}, {sT0}, {F_H + l*0x8000}
        v_mov_b32 {vHF}, {sT0}
        ''')
        if l == 0:
            PO, CS, CB = ACC, ACC + 4, ACC + 8
            self.pattern_ones(PO, 'v236', 'v237')
            a(f'''
            s_cmp_eq_u32 {sW}, 3
            s_cselect_b64 vcc, -1, 0
            s_cselect_b32 {sT2}, 9, 10
            s_lshl_b32 {sT2}, 1, {sT2}
            s_lshl_b32 {sT0}, {sW}, 15
            v_add_u32 {vA0}, {sT0}, {vL16}
            v_cndmask_b32 {vA0}, {vA0}, {WA[1]}, vcc
            v_and_b32 v236, 15, {vLANE}
            v_cndmask_b32 v236, {vT}, v236, vcc
            s_mul_i32 {sT0}, {sM}, 224
            s_lshl_b32 {sT1}, {sW}, 6
            s_add_u32 {sT0}, {sT0}, {sT1}
            v_lshl_add_u32 v236, v236, 1, {sT0}
            ''')
            bl = a(f'global_load_ushort {vA4}, v236, {sB1}')
            rd = {}

            def crd(s):
                rd[s] = a(f'ds_read_b128 {vr(CB+4*(s%8),4)}, {vA0}')
                a(f'v_add_u32 {vA0}, {sT2}, {vA0}')
            for s in range(8):
                crd(s)
            for s in range(32):
                a.wait(rd[s])
                a(f'{MF16} {vr(CS,4)}, {vr(PO,4)}, {vr(CB+4*(s%8),4)}, {"0" if s == 0 else vr(CS,4)}')
                if s + 8 < 32:
                    crd(s + 8)
            self.ext_w(f'v{CS}', vA0, CB+2)
        wl = {}
        for s in range(2):
            b = WB + 8*(s % 3)
            wl[s] = (wr(b, s, 0), wr(b+4, s, 1))
        sl, xs = self.xload(2*l+1, SD)
        if l == 0:
            self.wreg_bg(W2T, 0x38000, 28*2048, 28, lambda i, j: ar(8*i+4*j, 4), lo=self.opt.get('w2b', 12))
        acc = [ACC, ACC + 16, ACC + 32, ACC]

        def gelu(c):
            A = acc[c]
            n = 8 if c == 3 else 16
            o = []
            P = 224 if c % 2 else GT + 4
            for j0 in range(0, n, 4):
                t = [f'v{GT+i}' for i in range(4)]
                x = [f'v{A+j0+i}' for i in range(4)]
                for i in range(4):
                    o.append(f'v_mul_f32 {t[i]}, {x[i]}, {x[i]}')
                for i in range(4):
                    o.append(f'v_fma_f32 {t[i]}, {t[i]}, {vK1}, {vK0}')
                for i in range(4):
                    o.append(f'v_mul_f32 {t[i]}, {t[i]}, {x[i]}')
                for i in range(4):
                    o.append(f'v_exp_f32 {t[i]}, {t[i]}')
                for i in range(4):
                    o.append(f'v_fma_f32 {t[i]}, {t[i]}, {vS}, {vS}')
                for i in range(4):
                    o.append(f'v_rcp_f32 {t[i]}, {t[i]}')
                for i in range(4):
                    o.append(f'v_mul_f32 {t[i]}, {t[i]}, {x[i]}')
                o.append(f'v_cvt_pk_bf16_f32 v{P+j0//2}, {t[0]}, {t[1]}')
                o.append(f'v_cvt_pk_bf16_f32 v{P+j0//2+1}, {t[2]}, {t[3]}')

            def st():
                ls = [f'global_store_dwordx4 {vHA}, {vr(P,4)}, {sWS} offset:{2*c*1024-4096}']
                if c < 3:
                    ls.append(f'global_store_dwordx4 {vHA}, {vr(P+4,4)}, {sWS} offset:{(2*c+1)*1024-4096}')
                self.hst = self.stores(ls)
            o.append(('call', st))
            return o

        def ext(c):
            xe = XE + 2 if c % 2 == 0 else XE
            a(f'{MF32} {vr(acc[c],16)}, {ar(AEXT+4*(c//2),4)}, {vr(xe,4)}, {vr(acc[c],16)}')
        so = self.stats_ops(SD, True)
        for s in range(32):
            b = WB + 8*(s % 3)
            a.wait(xs[s], wl[s][1])
            a(f'{MF32} {vr(acc[0],16)}, {vr(b,4)}, {vr(X+4*s,4)}, {"0" if s == 0 else vr(acc[0],16)}')
            b2 = WB + 8*((s+2) % 3)
            if s + 2 < 32:
                w0 = wr(b2, s+2, 0)
            self.xnext(1)
            if s >= self.opt.get('sa', 7)+1:
                for o in so[:3]:
                    a(o)
                so = so[3:]
            a(f'{MF32} {vr(acc[1],16)}, {vr(b+4,4)}, {vr(X+4*s,4)}, {"0" if s == 0 else vr(acc[1],16)}')
            if s % 2 == 0 or s < self.opt.get('il2', 8):
                self.xnext(1)
            if s + 2 < 32:
                wl[s+2] = (w0, wr(b2+4, s+2, 1))
            if s >= 16 and not self.xq:
                self.bg(1)
        for o in so:
            a(o)
        if l == 0:
            a.wait(bl)
            a(f'''
            v_lshl_or_b32 {vA1}, {vA4}, 16, {vA4}
            s_mul_i32 {sT0}, {sW}, {3*4096}
            s_add_u32 {sT0}, {sT0}, {LB}
            v_lshl_add_u32 {vA2}, {vLANE}, 3, {sT0}
            ds_write_b64 {vA2}, v[26:27]
            v_lshlrev_b32 {vA2}, 3, {vLANE}
            v_add_u32 {vA2}, {LB}, {vA2}
            s_waitcnt lgkmcnt(0)
            s_barrier
            ''')
            for c in range(4):
                a(f'ds_read_b64 {ar(AEXT+2*c,2)}, {vA2} offset:{c*3*4096}')
            a('s_waitcnt lgkmcnt(0)')

            def wsetup():
                a(f'''
                v_lshrrev_b32 {vBG1}, 2, {vLANE}
                v_and_b32 {vBG2}, 3, {vLANE}
                s_movk_i32 {sT0}, 3072
                v_mul_u32_u24 {vBG1}, {sT0}, {vBG1}
                v_lshl_add_u32 {vBG1}, {vBG2}, 4, {vBG1}
                s_mul_i32 {sT0}, {sW}, 49152
                s_lshl_b32 {sT1}, {sM}, 6
                s_add_u32 {sT0}, {sT0}, {sT1}
                v_add_u32 {vBG0}, {sT0}, {vBG1}
                ''')
            self.bgq.append(wsetup)
            for q in range(8):
                for p in (1, 2):
                    self.bgq.append(lambda q=q, p=p: self.wqkv_dma1(vBG0, vBG1, q, p))
        ext(0)
        ext(1)
        self.stamp('p3a')

        def tilepass(c, ops, hooks):
            wl = {}
            for s in range(3):
                wl[s] = wr(WB + 4*(s % 4), s, c)
            per = -(-len(ops) // hooks.get('n', 31))
            for s in range(32):
                a.wait(wl[s])
                a(f'{MF32} {vr(acc[c],16)}, {vr(WB+4*(s%4),4)}, {vr(X+4*s,4)}, {"0" if s == 0 else vr(acc[c],16)}')
                if s + 3 < 32:
                    wl[s+3] = wr(WB + 4*((s+3) % 4), s+3, c)
                if s >= 1:
                    for o in ops[:per]:
                        self.do(o)
                    ops = ops[per:]
                if s % 2 == 0:
                    self.bg(1)
                if s in hooks:
                    hooks[s]()
            assert not ops
            ext(c)
        tilepass(2, gelu(0) + gelu(1), {})
        self.stamp('p3b')
        hA = self.hst

        def flagA():
            a.wait(hA)
            self.flag_store(vHF)

        def p4pre():
            self.act_addr(112*1024, f'''
            s_mul_i32 {sT1}, {sRH}, {2*112*1024}
            s_add_u32 {sT0}, {sGB}, {sT1}
            s_mul_i32 {sT1}, {sW}, {28*1024}
            s_add_u32 {sT0}, {sT0}, {sT1}
            s_add_u32 {sT0}, {sT0}, {HF + l*self.hs}
            ''', 3072)
            a(f'''
            s_lshl_b32 {sT0}, {sG}, 1
            s_add_u32 {sT0}, {sT0}, {sRH}
            s_lshl_b32 {sT0}, {sT0}, 2
            s_add_u32 {sT0}, {sT0}, {sW}
            s_lshl_b32 {sT0}, {sT0}, 7
            s_add_u32 {sT0}, {sT0}, {F_H + l*0x8000}
            v_and_b32 {vA3}, 7, {vLANE}
            v_lshl_add_u32 {vA3}, {vA3}, 2, {sT0}
            s_lshl_b32 {sT0}, {sPQ}, 6
            v_lshl_add_u32 {vA0}, {vH}, 3, {sT0}
            ''')
            for i in range(4):
                self.bl = a(f'global_load_dwordx2 {vr(ACC+16+2*i,2)}, {vA0}, {sB2} offset:{16*i}')

        def pollA():
            self.hp = self.poll_issue(vA3)
        tilepass(3, gelu(2), {12: flagA, 20: p4pre, 30: pollA})
        self.bg(100)
        self.stamp('p3c')
        self.g3 = gelu(3)
        self.vHF = vHF

    def p4(self, l):
        a = self.a
        RA, PA = 224, 228
        vHF = self.vHF
        R = 16
        order = [(mm, j) for mm in range(4) for j in range(4)] + [(mm, j) for mm in range(4) for j in range(4, 7)]
        seqs = {}
        cur = [0]

        def ld(n):
            mm, j = order[n]
            if mm != cur[0]:
                d = (mm - cur[0]) * 7168
                a(f'v_add_u32 {vA1}, {hx(d)}, {vA1}\nv_add_u32 {vA2}, {hx(d)}, {vA2}')
                cur[0] = mm
            b = X + 8*(n % R)
            s0 = a(f'global_load_dwordx4 {vr(b,4)}, {vA1}, {sWS} offset:{j*1024-3072} sc1')
            s1 = a(f'global_load_dwordx4 {vr(b+4,4)}, {vA2}, {sWS} offset:{j*1024-3072} sc1')
            seqs[n] = (s0, s1)
        if l == 0:
            a('s_barrier')
        self.poll_check(self.hp, vA3)
        self.stamp('hflag')
        g3 = self.g3
        for n in range(4):
            ld(n)
            for o in g3[:16]:
                self.do(o)
            g3 = g3[16:]
        assert not g3
        hB = self.hst
        P4 = self.opt.get('p4', 0)
        for n in range(4, P4 if P4 else 12):
            ld(n)
        a(f'v_add_u32 {vA3}, 0x4000, {vA3}\nv_add_u32 {vHF}, 0x4000, {vHF}')
        BT = ACC + 16
        a.wait(self.bl)
        self.unpack_res(ACC)
        for i in range(8):
            a(f'v_lshlrev_b32 {vA0}, 16, v{BT+i}')
            a(f'v_and_b32 {vA4}, 0xffff0000, v{BT+i}')
            a(f'v_add_f32 v{ACC+2*i}, v{ACC+2*i}, {vA0}')
            a(f'v_add_f32 v{ACC+2*i+1}, v{ACC+2*i+1}, {vA4}')
        self.reduce_addr(RA)
        if l == 0:
            self.xpub_addr(2, PA)
        else:
            self.res_addr(f'v{PA}')
        late = []
        PB = self.opt.get('pb', 6)
        for n in range(28):
            mm, j = order[n]
            k = 7*mm + j
            b = X + 8*(n % R)
            wreg = lambda jj: ar(8*k + 4*jj, 4)
            c = lambda i: '0' if n == 0 else vr(ACC+16*i, 16)
            a.wait(seqs[n][0])
            a(f'{MF32} {vr(ACC+16,16)}, {wreg(1)}, {vr(b,4)}, {c(1)}')
            m0 = f'{MF32} {vr(ACC,16)}, {wreg(0)}, {vr(b,4)}, {vr(ACC,16)}'
            if n >= 20:
                late.append(m0)
            else:
                a(m0)
            a.wait(seqs[n][1])
            a(f'{MF32} {vr(ACC+32,16)}, {wreg(0)}, {vr(b+4,4)}, {c(2)}')
            a(f'{MF32} {vr(ACC+48,16)}, {wreg(1)}, {vr(b+4,4)}, {c(3)}')
            if n == self.opt.get('fb', 3):
                a.wait(hB)
                self.flag_store(vHF)
            if P4:
                if n == PB:
                    pb = self.poll_issue(vA3)
                if n + P4 == 16:
                    self.poll_check(pb, vA3)
                    self.stamp('hflagB')
                if n + P4 < 28:
                    ld(n + P4)
                if n + P4 == 27 and l == 0:
                    for q in range(8):
                        self.bgq.append(lambda q=q: self.wqkv_dma1(vBG0, vBG1, q, 0))
                if n + P4 >= 27:
                    self.bg(1)
            if n == PB and not P4:
                pb = self.poll_issue(vA3)
                for nn in range(12, 16):
                    ld(nn)
            if n == 11 and not P4:
                self.poll_check(pb, vA3)
                self.stamp('hflagB')
                for nn in range(16, 28):
                    ld(nn)
                if l == 0:
                    for q in range(8):
                        self.bgq.append(lambda q=q: self.wqkv_dma1(vBG0, vBG1, q, 0))
            if n > 11:
                self.bg(1)
        self.stamp('p4mm')
        a(late.pop(0))
        a(late.pop(0))
        self.reduce64(X, RA, late)
        self.stamp('p4red')
        if l == 0:
            self.x_publish(2, PA)
            self.stamp('p4')
        else:
            for i in range(4):
                a(f'global_store_dwordx2 v{PA}, {vr(RES+2*i,2)}, {sOUT} offset:{16*i}')
            self.stamp('end')

    def finish(self):
        a = self.a
        sk = a.newlabel('noep')
        a(f'''
        s_or_b32 {sT0}, s2, {sW}
        s_cmp_lg_u32 {sT0}, 0
        s_cbranch_scc1 {sk}
        v_mov_b32 {vA0}, 0
        v_mov_b32 {vA1}, {sEP}
        global_store_dword {vA0}, {vA1}, {sWS} sc1
        ''')
        a.label(sk)
        if self.prof:
            a(f's_waitcnt vmcnt(0)\ns_memrealtime {sPT}\ns_waitcnt lgkmcnt(0)\nv_writelane_b32 v0, s54, 63')
            a(f'''
            s_lshl_b32 {sT0}, s2, 2
            s_add_u32 {sT0}, {sT0}, {sW}
            s_lshl_b32 {sT0}, {sT0}, 8
            s_add_u32 {sT0}, {sT0}, {PROF}
            v_lshl_add_u32 {vA0}, {vLANE}, 2, {sT0}
            global_store_dword {vA0}, v0, {sWS}
            ''')


if __name__ == '__main__':
    prof = 'prof' in sys.argv
    out = sys.argv[1] if len(sys.argv) > 1 else 'k.s'
    opt = {}
    for x in sys.argv[2:]:
        if '=' in x:
            k, v = x.split('=')
            opt[k] = int(v)
    g = Gen(prof=prof, opt=opt)
    t = g.build()
    open(out, 'w').write(t)
    print('instrs', g.a.ninstr, 'nops', g.a.nops, 'bytes', len(t))
    open(out + '.names', 'w').write(' '.join(g.names))
```

```python
import sys, math, struct
from asm2 import *

NAME = 'interleave_layers__sliding_block__mixer_channel_mlp__prompt_kernel'

FL = 0x1000
F_WT = FL
F_X = FL + 0x8000
F_O = FL + 0x10000
F_H = FL + 0x18000
F_KV = FL + 0x28000
ST = 0x80000
PROF = 0x180000
WT = 0x200000
W1T = WT
W2T = WT + 0x1C0000
WOT = WT + 0x380000
G0 = 0x600000
GB = 0x200000
XF = 0x0
OF = 0x60000
KV = 0xA0000
HF = 0x120000

A0, A1, A2, A3 = 0, 32768, 65536, 98304
LB = 114688
RING = 98304
QX = A3
RB = A3 + 8192

sX, sWQKV, sWO, sW1, sB1, sW2, sB2, sOUT, sDBG, sWS = 's[4:5]', 's[6:7]', 's[8:9]', 's[12:13]', 's[14:15]', 's[16:17]', 's[18:19]', 's[20:21]', 's[22:23]', 's[24:25]'
sG, sM, sW, sRH, sCT, sEP, sMODE, sGB = 's26', 's27', 's28', 's29', 's30', 's31', 's33', 's34'
sTT, sFT, sLIM, sONE2, sHM = 's35', 's36', 's37', 's38', 's[40:41]'
sLO16 = 's[42:43]'
sT0, sT1, sT2, sT3, sT4, sT5 = 's44', 's45', 's46', 's47', 's48', 's49'
sRING = 's50'
sCNT = 's51'
sXCC = 's52'
sPT = 's[54:55]'
sPI = 's56'
sIA, sIB = 's57', 's58'
sW1K = 's59'
sW8K = 's60'
sHD = 's61'
sTQ = 's62'
sPQ = 's63'
MASK0 = 64

vLANE, vL16, vT, vH = 'v1', 'v2', 'v3', 'v4'
vTR0, vTR1 = 'v5', 'v6'
vHZ = 'v7'
RES = 8
XE = 16
vR, vS, vK0, vK1 = 'v22', 'v23', 'v24', 'v25'
vA0, vA1, vA2, vA3, vA4, vA5 = 'v26', 'v27', 'v28', 'v29', 'v30', 'v31'
X = 32
ACC = 160
AEXT = 224
vBG0, vBG1, vBG2 = 'v253', 'v254', 'v255'

BIGNEG = 0xF149F2CA


def vr(b, n):
    return f'v[{b}:{b+n-1}]' if n > 1 else f'v{b}'


def ar(b, n):
    return f'a[{b}:{b+n-1}]' if n > 1 else f'a{b}'


def f2h(x):
    return hex(struct.unpack('<I', struct.pack('<f', x))[0])


def hx(x):
    return hex(x & 0xffffffff)


GK0 = -2.0 * math.sqrt(2.0 / math.pi) * math.log2(math.e)
GK1 = GK0 * 0.044715
MF32 = 'v_mfma_f32_32x32x16_bf16'
MF16 = 'v_mfma_f32_16x16x32_bf16'


class Gen:
    def __init__(self, prof=False, opt=None):
        self.a = Asm()
        self.prof = prof
        self.names = []
        self.bgq = []
        self.tail = []
        self.opt = opt or {}
        ru = self.opt.get('reuse', 1)
        self.hs = 0 if ru else 0x70000
        self.os = 0 if ru else 0x20000
        self.xo = {1: 0, 2: 0 if ru else 0x20000, 3: 0 if ru else 0x40000}
        self.ss = 0 if ru else 0x40000

    def stamp(self, name=''):
        if not self.prof:
            return
        a = self.a
        self.names.append(name)
        n = len(self.names) - 1
        a(f'''
        s_memtime {sPT}
        s_waitcnt lgkmcnt(0)
        v_writelane_b32 v0, s54, {n}
        ''')

    def bg(self, n=1):
        for _ in range(n):
            if self.bgq:
                self.bgq.pop(0)()

    def poll_loop(self, vaddr, shift=0):
        a = self.a
        lp = a.newlabel('poll')
        dn = a.newlabel('polld')
        a(f's_mov_b32 {sCNT}, 0')
        a.label(lp)
        a(f'global_load_dword {vA5}, {vaddr}, {sWS} sc1', count=False)
        a('s_waitcnt vmcnt(0)')
        self.cmpflag(shift)
        a(f'''
        s_add_u32 {sCNT}, {sCNT}, 1
        s_cmp_eq_u64 vcc, 0
        s_cbranch_scc1 {dn}
        s_cmp_lt_u32 {sCNT}, {sLIM}
        s_cbranch_scc1 {lp}
        s_mov_b32 {sLIM}, 1
        ''')
        a.label(dn)

    def cmpflag(self, shift):
        a = self.a
        if shift:
            a(f'v_xor_b32 {vA4}, {sEP}, {vA5}')
            a(f'v_cmp_le_u32 vcc, {1 << shift}, {vA4}')
        else:
            a(f'v_cmp_ne_u32 vcc, {sEP}, {vA5}')

    def poll_issue(self, vaddr):
        return self.a(f'global_load_dword {vA5}, {vaddr}, {sWS} sc1')

    def poll_check(self, seq, vaddr, shift=0):
        a = self.a
        ok = a.newlabel('pok')
        a.wait(seq)
        self.cmpflag(shift)
        a(f's_nop 0\ns_cmp_eq_u64 vcc, 0\ns_cbranch_scc1 {ok}')
        sv = (a.vm_done, a.lg_done)
        self.poll_loop(vaddr, shift)
        a.vm_done, a.lg_done = sv
        a.label(ok)

    def stores(self, lines):
        a = self.a
        sl = a.newlabel('slow')
        en = a.newlabel('sten')
        a(f's_cmp_eq_u32 {sMODE}, 1')
        a(f's_cbranch_scc0 {sl}')
        seq = None
        for ln in lines:
            seq = a(ln)
        a.label(en)
        self.tail.append(f'{sl}:\n    s_nop 15\n' + ''.join(f'    {ln} sc1\n' for ln in lines) + f'    s_nop 1\n    s_branch {en}')
        return seq

    def flag_store(self, vaddr, slow=False, val=None):
        a = self.a
        a(f'v_mov_b32 {vA4}, {val or sEP}')
        ln = f'global_store_dword {vaddr}, {vA4}, {sWS}'
        if slow:
            a(ln + ' sc1')
        else:
            self.stores([ln])

    def stats_load(self, inst, dst):
        a = self.a
        seq = None
        for j in range(8):
            seq = a(f'global_load_dwordx2 {vr(dst+2*j,2)}, {vA2}, {sWS} offset:{j*256} sc1')
        return seq

    def stats_ops(self, src, mlp, summed=False):
        o = []
        S, Q = f'v{src}', f'v{src+1}'
        if not summed:
            for j in range(1, 8):
                o.append(f'v_add_f32 {S}, {S}, v{src+2*j}')
                o.append(f'v_add_f32 {Q}, {Q}, v{src+2*j+1}')
        t0, t1, t2, t3 = [f'v{src+i}' for i in (2, 3, 4, 5)]
        o += [
            f'v_permlane32_swap_b32 {S}, {Q}',
            f'v_add_f32 {S}, {S}, {Q}',
            f'v_mov_b32 {Q}, {S}',
            f'v_permlane32_swap_b32 {S}, {Q}',
            f'v_mul_f32 {S}, 0xbb000000, {S}',
            f'v_mul_f32 {t0}, {S}, {S}',
            f'v_mul_f32 {Q}, 0x3b000000, {Q}',
            f'v_sub_f32 {Q}, {Q}, {t0}',
            f'v_max_f32 {Q}, 0, {Q}',
            f'v_add_f32 {t0}, 0x3727c5ac, {Q}',
            f'v_rsq_f32 {vR}, {t0}',
            f'v_cvt_pk_bf16_f32 {t1}, {S}, {S}',
            f'v_lshlrev_b32 {t1}, 16, {t1}',
            f'v_sub_f32 {t1}, {S}, {t1}',
            f'v_mul_f32 {t1}, {t1}, {vHZ}',
            f'v_cvt_pk_bf16_f32 v{XE+2}, {S}, {t1}',
        ]
        if mlp:
            o += [
                f'v_mul_f32 {t2}, {vR}, {vR}',
                f'v_mul_f32 {vS}, {t0}, {vR}',
                f'v_mov_b32 {t3}, 0x3727c5ac',
                f'v_fma_f32 {t2}, {Q}, {t2}, {t3}',
                f'v_rsq_f32 {t3}, {t2}',
                f'v_mul_f32 {vS}, {vS}, {t2}',
                f'v_mul_f32 {vR}, {vR}, {t3}',
                f'v_mul_f32 {vS}, {vS}, {t3}',
                f'v_cvt_pk_bf16_f32 {t1}, {vS}, {vS}',
                f'v_lshlrev_b32 {t1}, 16, {t1}',
                f'v_sub_f32 {t1}, {vS}, {t1}',
                f'v_mul_f32 {t1}, {t1}, {vHZ}',
                f'v_mul_f32 {t2}, {vS}, {vHZ}',
                f'v_cvt_pk_bf16_f32 v{XE+3}, {t2}, {t1}',
                f'v_mul_f32 {t0}, {vR}, {vR}',
                f'v_mul_f32 {vK0}, {f2h(GK0)}, {vR}',
                f'v_mul_f32 {t0}, {t0}, {vR}',
                f'v_mul_f32 {vK1}, {f2h(GK1)}, {t0}',
            ]
        else:
            o += [f'v_mov_b32 v{XE+3}, 0']
        return o

    def ext_w(self, c, dst, tmp):
        a = self.a
        t0, t1 = f'v{tmp}', f'v{tmp+1}'
        a(f'''
        v_cvt_pk_bf16_f32 {t0}, {c}, {c}
        v_lshlrev_b32 {t0}, 16, {t0}
        v_sub_f32 {t0}, {c}, {t0}
        v_cndmask_b32 {t0}, {c}, {t0}, {sHM}
        v_mul_f32 {t1}, {c}, {vHZ}
        v_cvt_pk_bf16_f32 {dst}, {t0}, {t1}
        ''')

    def trw(self, dst, s, part):
        a = self.a
        b, off = {0: (vTR1, 0), 1: (vTR0, A0), 2: (vTR0, A1)}[part]
        off += s * 1024
        a(f'ds_read_b64_tr_b16 {vr(dst,2)}, {b} offset:{off}')
        return a(f'ds_read_b64_tr_b16 {vr(dst+2,2)}, {b} offset:{off+512}')

    def wqkv_dma1(self, vsrc, vtmp, q, p):
        a = self.a
        base = {0: A2, 1: A0, 2: A1}[p]
        a(f's_add_u32 m0, {sW1K}, {hx(base + q*4096)}')
        a(f'v_add_u32 {vtmp}, {q*4*49152 + p*1024}, {vsrc}')
        return a(f'global_load_lds_dwordx4 {vtmp}, {sWQKV}' + (' nt' if self.opt.get('nt', 0) & 2 else ''))

    def pattern_ones(self, PO, vA2=vA2, vA3=vA3):
        a = self.a
        a(f'''
        v_bfe_u32 {vA2}, {vLANE}, 2, 1
        v_bfe_u32 {vA3}, {vLANE}, 4, 1
        v_cmp_eq_u32 vcc, {vA2}, {vA3}
        v_mov_b32 {vA2}, {sONE2}
        v_cndmask_b32 v{PO}, 0, {vA2}, vcc
        v_cndmask_b32 v{PO+1}, 0, {vA2}, vcc
        v_cndmask_b32 v{PO+2}, 0, {vA2}, vcc
        v_cndmask_b32 v{PO+3}, 0, {vA2}, vcc
        ''')

    def do(self, o):
        if isinstance(o, str):
            self.a(o)
        elif o[0] == 'wait':
            self.a.wait(*o[1:])
        elif o[0] == 'call':
            o[1]()

    def build(self):
        a = self.a
        a.raw('; @launch grid=(256,1,1) block=(256,1,1) lds=163840')
        a.raw('.amdgcn_target "amdgcn-amd-amdhsa--gfx950"\n.text')
        a.raw(kernel_head(NAME))
        self.prologue()
        for l in range(2):
            if l == 0:
                self.p1a_l0()
            else:
                self.p1a_l1()
            self.p1b(l)
            self.attention(l)
            self.p2(l)
            self.p3(l)
            self.p4(l)
        assert not self.bgq
        self.finish()
        a.label('.EXIT')
        a('s_endpgm')
        for t in self.tail:
            a.raw(t)
        a.label('.CEND')
        a.raw('.section .rodata,"a"')
        a.raw(kernel_desc(NAME, 512, 256, 102))
        return a.text()

    def prologue(self):
        a = self.a
        a(f'''
        s_cmp_ge_u32 s2, 256
        s_cbranch_scc1 .EXIT
        s_load_dwordx4 s[4:7], s[0:1], 0
        s_load_dwordx2 s[24:25], s[0:1], 80
        s_load_dwordx2 s[8:9], s[0:1], 16
        s_load_dwordx8 s[12:19], s[0:1], 32
        s_load_dwordx4 s[20:23], s[0:1], 64
        v_lshrrev_b32 v5, 6, v0
        v_and_b32 {vLANE}, 63, v0
        s_and_b32 {sT0}, s2, 7
        v_readfirstlane_b32 {sW}, v5
        s_lshr_b32 {sT1}, s2, 3
        s_lshr_b32 {sT2}, {sT1}, 4
        s_lshl_b32 {sT0}, {sT0}, 1
        s_add_u32 {sG}, {sT0}, {sT2}
        s_and_b32 {sM}, {sT1}, 15
        s_lshr_b32 {sRH}, {sM}, 3
        s_and_b32 {sCT}, {sM}, 7
        s_lshr_b32 {sTT}, {sW}, 1
        s_and_b32 {sFT}, {sW}, 1
        s_lshl_b32 {sW1K}, {sW}, 10
        s_lshl_b32 {sW8K}, {sW}, 13
        v_lshlrev_b32 {vL16}, 4, {vLANE}
        v_and_b32 {vT}, 31, {vLANE}
        v_lshrrev_b32 {vH}, 5, {vLANE}
        v_mov_b32 v0, 0
        ''')
        if self.opt.get('ip', 0):
            a(f's_getpc_b64 s[10:11]')
            a.label('.PC0')
            a(f'''
            s_lshl_b32 {sT0}, {sT1}, 2
            s_add_u32 {sT0}, {sT0}, {sW}
            s_lshl_b32 {sT0}, {sT0}, 9
            v_and_b32 v5, {(0,3,7,15)[self.opt['ip']]}, {vLANE}
            v_lshl_add_u32 v5, v5, {8-self.opt['ip']}, {sT0}
            v_min_u32 v5, .CEND-.PC0-4, v5
            global_load_dword v252, v5, s[10:11]
            ''')
        if self.prof:
            a(f's_memrealtime {sPT}\ns_waitcnt lgkmcnt(0)\nv_writelane_b32 v0, s54, 62')

    def prologue2(self):
        a = self.a
        a(f'''
        s_mov_b32 {sMODE}, 0
        s_mov_b32 {sLIM}, 40000
        s_mov_b32 {sONE2}, 0x3f803f80
        s_mov_b32 s40, 0
        s_mov_b32 s41, -1
        s_mov_b32 s42, 0xffff
        s_mov_b32 s43, 0xffff
        s_lshl_b32 {sGB}, {sG}, 21
        s_add_u32 {sGB}, {sGB}, {G0}
        s_getreg_b32 {sXCC}, hwreg(HW_REG_XCC_ID)
        s_and_b32 {sXCC}, {sXCC}, 7
        s_lshl_b32 {sTQ}, {sG}, 2
        s_lshl_b32 {sT1}, {sRH}, 1
        s_add_u32 {sTQ}, {sTQ}, {sT1}
        s_add_u32 {sTQ}, {sTQ}, {sTT}
        s_lshl_b32 {sPQ}, {sCT}, 1
        s_add_u32 {sPQ}, {sPQ}, {sFT}
        v_cndmask_b32 {vHZ}, 1.0, 0, {sHM}
        v_bfe_u32 {vA0}, {vLANE}, 2, 2
        v_lshl_add_u32 {vA0}, {vH}, 2, {vA0}
        v_lshlrev_b32 {vA0}, 6, {vA0}
        v_bfe_u32 {vA1}, {vLANE}, 4, 1
        v_lshl_add_u32 {vA0}, {vA1}, 5, {vA0}
        v_and_b32 {vA1}, 3, {vLANE}
        v_lshl_add_u32 {vTR0}, {vA1}, 3, {vA0}
        v_add_u32 {vTR1}, {A2}, {vTR0}
        v_mov_b32 v{XE}, 0
        v_mov_b32 v{XE+1}, 0
        v_mov_b32 v{XE+4}, 0
        v_mov_b32 v{XE+5}, 0
        v_lshlrev_b32 {vA0}, 2, {vH}
        v_sub_u32 {vA0}, {vT}, {vA0}
        s_lshl_b32 {sT0}, {sG}, 2
        s_sub_i32 {sT0}, 7, {sT0}
        s_sub_i32 {sIA}, {sT0}, {sTT}
        s_add_i32 {sIB}, {sT0}, {sTT}
        s_sub_i32 {sIB}, {sIB}, 3
        ''')
        for j in range(16):
            c = 8 * (j >> 2) + (j & 3)
            a(f'v_cmp_le_i32 s[{MASK0+2*j}:{MASK0+2*j+1}], {c}, {vA0}')

    def res_addr(self, v):
        a = self.a
        a(f'''
        s_lshl_b32 {sT0}, {sTQ}, 15
        s_lshl_b32 {sT1}, {sPQ}, 6
        s_add_u32 {sT0}, {sT0}, {sT1}
        v_lshlrev_b32 {v}, 10, {vT}
        v_lshl_add_u32 {v}, {vH}, 3, {v}
        v_add_u32 {v}, {sT0}, {v}
        ''')

    def p1a_l0(self):
        a = self.a
        accK, accV = ACC, ACC + 16
        WB = ACC + 32
        XT = 216
        PO = 224
        CS = 228
        XA = 240
        XR = 244
        WS_ = 'v248'
        vEPO = 'v249'
        vTM = 'v250'
        SM, SQ, ON = RES, RES + 4, 22
        vCT = vK0
        TS = X + 4*28
        AQ, AS = 32, 64
        MF4 = 'v_mfma_f32_4x4x4_16b_bf16'
        XCH = A1 + 2*4096
        a(f"""
        v_lshrrev_b32 {vA0}, 2, {vLANE}
        v_and_b32 {vA1}, 3, {vLANE}
        v_and_b32 {vA2}, 3, {vA0}
        v_bfe_u32 {vA3}, {vA0}, 2, 1
        v_lshl_add_u32 {vA2}, {vA3}, 3, {vA2}
        v_bfe_u32 {vA3}, {vA0}, 3, 1
        v_lshl_add_u32 {vA2}, {vA3}, 2, {vA2}
        s_movk_i32 {sT2}, 3072
        v_mul_u32_u24 {vA2}, {sT2}, {vA2}
        v_lshl_add_u32 {vA2}, {vA1}, 4, {vA2}
        s_mul_i32 {sT0}, {sW}, 49152
        s_lshl_b32 {sT1}, {sM}, 6
        s_add_u32 {sT0}, {sT0}, {sT1}
        v_add_u32 {WS_}, {sT0}, {vA2}
        s_lshl_b32 {sT0}, {sG}, 7
        s_lshl_b32 {sT1}, {sW}, 5
        s_add_u32 {sT0}, {sT0}, {sT1}
        s_lshl_b32 {sT0}, {sT0}, 10
        s_lshl_b32 {sRING}, {sW}, 14
        s_add_u32 {sRING}, {sRING}, {RING}
        v_lshrrev_b32 {vA0}, 3, {vLANE}
        v_and_b32 {vA1}, 7, {vLANE}
        v_lshrrev_b32 {vA2}, 1, {vA0}
        v_xor_b32 {vA1}, {vA1}, {vA2}
        v_lshlrev_b32 {vA0}, 10, {vA0}
        v_add_u32 {vA0}, {sT0}, {vA0}
        v_lshl_add_u32 v{XA}, {vA1}, 4, {vA0}
        v_xor_b32 {vA1}, 4, {vA1}
        v_lshl_add_u32 v{XA+1}, {vA1}, 4, {vA0}
        v_add_u32 v{XA+1}, 8192, v{XA+1}
        v_add_u32 v{XA+2}, 16384, v{XA}
        v_add_u32 v{XA+3}, 16384, v{XA+1}
        s_lshr_b32 {sT0}, s2, 3
        s_lshl_b32 {sT0}, {sT0}, 1
        s_lshl_b32 {sT1}, {sW}, 6
        s_add_u32 {sT0}, {sT0}, {sT1}
        v_bfe_u32 {vA3}, {vLANE}, 4, 1
        v_add_u32 {vA3}, {sT0}, {vA3}
        v_mul_u32_u24 {vA3}, {sT2}, {vA3}
        v_and_b32 {vA4}, 15, {vLANE}
        v_lshl_add_u32 v{TS+5}, {vA4}, 7, {vA3}
        v_add_u32 v{TS+6}, {256*3072}, v{TS+5}
        v_and_b32 {vA4}, 7, {vLANE}
        v_lshl_add_u32 {vA3}, {vA4}, 7, {vA3}
        v_bfe_u32 {vA5}, {vLANE}, 3, 1
        s_mov_b32 {sT2}, {256*3072}
        v_mad_u32_u24 v{TS+7}, {vA5}, {sT2}, {vA3}
        s_lshl_b32 {sT0}, {sG}, 17
        s_lshl_b32 {sT1}, {sM}, 13
        s_add_u32 {sT0}, {sT0}, {sT1}
        s_lshl_b32 {sT1}, {sW}, 7
        s_add_u32 {sT0}, {sT0}, {sT1}
        v_lshl_add_u32 {vA4}, {vA4}, 10, {sT0}
        v_lshl_add_u32 {vA4}, {vA5}, 9, {vA4}
        s_waitcnt lgkmcnt(0)
        """)
        self.stamp('start')
        cp = self.opt.get('cp', 1)
        gs = {}
        xr = {}
        cnt = {}
        cur = [-1]

        def xd(c, j):
            if c >= 4:
                a.wait(xr[c-4])
            a(f's_add_u32 m0, {sRING}, {hx((c % 4)*4096 + j*1024 - c*128)}')
            gs[c] = a(f'global_load_lds_dwordx4 v{XA+j}, {sX} offset:{c*128}')
            cnt[c] = cnt.get(c, 0) + 1

        def wd(c, p):
            gs[c-1] = self.wqkv_dma1(WS_, vTM, c, p)
            cnt[c-1] = cnt.get(c-1, 0) + 1
        ops = []
        if cp:
            ops.append(lambda: a(f'global_load_dword v252, {vA4}, {sX}\nglobal_load_dword v252, v{TS+5}, {sWQKV} offset:1024'))
        ops += [lambda: wd(0, 1), lambda: wd(0, 2)]
        for c in range(8):
            ops += [lambda c=c, j=j: xd(c, j) for j in range(4)]
            if c < 7:
                ops += [lambda c=c: wd(c+1, 1), lambda c=c: wd(c+1, 2)]
            if c == 0:
                ops.append(lambda: a(f'v_mov_b32 {vA0}, 0\nglobal_load_dword {vEPO}, {vA0}, {sWS} sc1'))
                if cp:
                    ops.append(lambda: a(f'global_load_dword v252, v{TS+6}, {sWQKV} offset:1024'))
            if c == self.opt.get('cq', 2) and cp:
                ops.append(lambda: a(f'global_load_dword v252, v{TS+7}, {sWQKV}'))
            if c == self.opt.get('np', 3) - 1:
                npro = len(ops)
        tjs = []
        for i in range(5):
            def td(i=i):
                assert cur[0] >= 14
                a(f's_add_u32 m0, {sW1K}, {(A0 + i*4096) if i < 3 else (A1 + (i-3)*4096)}')
                self.tj = a(f'global_load_lds_dwordx4 v{TS+i}, {(sW1, sW1, sW2, sW2, sWO)[i]}')
            tjs.append(td)
        qds = [lambda q=q: setattr(self, 'wq_last', self.wqkv_dma1(WS_, vTM, q, 0)) for q in range(8)]
        ops += (tjs + qds) if self.opt.get('tfirst', 0) else (qds + tjs)
        for i, o in enumerate(ops[:npro]):
            o()
            if i == 9:
                self.prologue2()
        self.bgq = ops[npro:]
        a(f"""
        v_lshrrev_b32 {vA0}, 2, {vLANE}
        v_and_b32 {vA1}, 3, {vLANE}
        s_cmp_eq_u32 {sW}, 3
        s_cselect_b32 {sT2}, 1, 3
        v_and_b32 {vA2}, {sT2}, {vA1}
        s_movk_i32 {sT3}, 3584
        v_mul_u32_u24 {vA3}, {sT3}, {vA0}
        v_lshl_add_u32 {vA3}, {vA2}, 4, {vA3}
        s_mul_i32 {sT0}, {sG}, {32*3584}
        s_mul_i32 {sT1}, {sM}, 224
        s_add_u32 {sT0}, {sT0}, {sT1}
        s_lshl_b32 {sT1}, {sW}, 6
        s_add_u32 {sT0}, {sT0}, {sT1}
        v_add_u32 v{TS}, {sT0}, {vA3}
        v_lshlrev_b32 {vA4}, 10, {vA0}
        v_add_u32 v{TS+1}, {16*3584}, v{TS}
        v_lshl_add_u32 {vA4}, {vA1}, 4, {vA4}
        s_lshl_b32 {sT0}, {sCT}, 7
        s_lshl_b32 {sT1}, {sRH}, 6
        s_add_u32 {sT0}, {sT0}, {sT1}
        v_add_u32 {vA4}, {sT0}, {vA4}
        s_lshl_b32 {sT2}, {sW}, 1
        s_min_u32 {sT2}, {sT2}, 5
        s_mul_i32 {sT3}, {sG}, 7
        s_add_u32 {sT4}, {sT2}, {sT3}
        s_lshl_b32 {sT3}, {sT4}, 14
        v_add_u32 v{TS+2}, {sT3}, {vA4}
        v_add_u32 v{TS+3}, 16384, v{TS+2}
        s_lshl_b32 {sT5}, {sG}, 1
        s_add_u32 {sT5}, {sT5}, {sFT}
        s_lshl_b32 {sT3}, {sT5}, 14
        v_add_u32 v{TS+4}, {sT3}, {vA4}
        """)
        a(f"""
        v_and_b32 {vA1}, 15, {vLANE}
        v_lshl_add_u32 {vA1}, {vH}, 4, {vA1}
        v_lshlrev_b32 {vA1}, 4, {vA1}
        s_cmp_eq_u32 {sW}, 3
        s_cselect_b64 vcc, -1, 0
        s_cselect_b32 {sT2}, 10, 11
        v_cndmask_b32 {vA1}, {vL16}, {vA1}, vcc
        s_mul_i32 {sT0}, {sM}, 0x1C000
        s_lshl_b32 {sT1}, {sG}, {sT2}
        s_add_u32 {sT0}, {sT0}, {sT1}
        s_lshl_b32 {sT1}, {sW}, 15
        s_add_u32 {sT0}, {sT0}, {sT1}
        s_add_u32 {sT0}, {sT0}, {W1T}
        v_add_u32 {vBG0}, {sT0}, {vA1}
        s_sub_u32 {sT2}, {sT2}, 1
        s_lshl_b32 {sT2}, 1, {sT2}
        v_add_u32 v251, {sT2}, {vBG0}
        s_mul_i32 {sT0}, {sCT}, 0x38000
        s_lshl_b32 {sT1}, {sT4}, 11
        s_add_u32 {sT0}, {sT0}, {sT1}
        s_lshl_b32 {sT2}, {sRH}, 10
        s_add_u32 {sT0}, {sT0}, {sT2}
        s_add_u32 {sT0}, {sT0}, {W2T}
        v_add_u32 {vBG1}, {sT0}, {vL16}
        s_lshl_b32 {sT0}, {sCT}, 16
        s_lshl_b32 {sT1}, {sT5}, 11
        s_add_u32 {sT0}, {sT0}, {sT1}
        s_add_u32 {sT0}, {sT0}, {sT2}
        s_add_u32 {sT0}, {sT0}, {WOT}
        v_add_u32 {vBG2}, {sT0}, {vL16}
        """)
        a(f"""
        v_bfe_u32 {vA0}, {vT}, 1, 3
        v_lshlrev_b32 {vA1}, 7, {vT}
        v_add_u32 {vA1}, {sRING}, {vA1}
        """)
        for sp in range(4):
            a(f"""
            v_add_u32 {vA2}, {2*sp}, {vH}
            v_xor_b32 {vA2}, {vA2}, {vA0}
            v_lshl_add_u32 v{XR+sp}, {vA2}, 4, {vA1}
            """)
        self.pattern_ones(PO)
        a(f"""
        v_mov_b32 v{ON}, {sONE2}
        v_mov_b32 v{ON+1}, {sONE2}
        v_add_u32 {vCT}, {sW1K}, {vTR0}
        v_add_u32 {vK1}, {sW1K}, {vTR1}
        v_lshlrev_b32 {vA1}, 3, {vLANE}
        s_lshl_b32 {sT0}, {sW}, 9
        v_add_u32 {vA0}, {sT0}, {vA1}
        v_accvgpr_write_b32 a{AEXT+9}, 0
        v_accvgpr_write_b32 a{AEXT+11}, 0
        v_accvgpr_write_b32 a{AEXT+13}, 0
        v_accvgpr_write_b32 a{AEXT+14}, 0
        v_accvgpr_write_b32 a{AEXT+15}, 0
        """)
        self.stamp('issued')
        sh = {}

        def xread(c):
            for sp in range(4):
                xr[c] = a(f'ds_read_b128 {vr(X+4*(4*c+sp),4)}, v{XR+sp} offset:{(c%4)*4096}')

        def shread(c):
            b = AS + 8*(c % 2)
            for p in range(2):
                a(f'ds_read_b64_tr_b16 {ar(b+4*p,2)}, {vCT} offset:{(A0, A1)[p] + c*4096}')
                sh[c] = a(f'ds_read_b64_tr_b16 {ar(b+4*p+2,2)}, {vCT} offset:{(A0, A1)[p] + c*4096 + 512}')

        def shmm(c, p):
            a.wait(sh[c])
            a(f'{MF16} {vr(CS+4*p,4)}, {vr(PO,4)}, {ar(AS+8*(c%2)+4*p,4)}, {"0" if c == 0 else vr(CS+4*p,4)}')

        def stat(f, h):
            a.wait(xr[f // 4])
            z = f == 0 and h == 0
            x = vr(X+4*f+2*h, 2)
            a(f'{MF4} {vr(SQ,4)}, {x}, {x}, {"0" if z else vr(SQ,4)}')
            a(f'{MF4} {vr(SM,4)}, {vr(ON,2)}, {x}, {"0" if z else vr(SM,4)}')
        ev = {}

        def at(s, slot, f):
            ev.setdefault((s, slot), []).append(f)

        def arrive(c):
            if self.opt.get('fine'):
                self.stamp(f'e{c}')
            assert cnt[c] == (6 if c < 7 else 4)
            a.wait(gs[c])
            if self.opt.get('fine'):
                self.stamp(f'b{c}')
            xread(c)
            if c < 7:
                shread(c+1)
        for c in range(1, 8):
            at(4*c-3, 1, lambda c=c: arrive(c))
            at(4*c-3, 3, lambda: a('s_barrier'))
            if c < 7:
                at(4*c-2, 2, lambda c=c: shmm(c+1, 0))
                at(4*c-1, 0, lambda c=c: shmm(c+1, 1))
        at(0, 0, lambda: shmm(1, 0))
        at(0, 2, lambda: shmm(1, 1))

        def xw():
            a(f'v_mov_b32 v{CS+1}, v{CS+4}')
            self.xws = a(f'ds_write_b64 {vA0}, {vr(CS,2)} offset:{XCH}')
        at(24, 1, xw)
        ev[(25, 3)].insert(0, lambda: a.wait(self.xws))

        def xrd():
            for i in range(4):
                self.xrs = a(f'ds_read_b64 {vr(XT+2*i,2)}, {vA1} offset:{XCH + i*512}')
        at(25, 3, xrd)

        def xsum():
            a.wait(self.xrs)
            for i in range(1, 4):
                a(f'v_add_f32 v{XT}, v{XT}, v{XT+2*i}\nv_add_f32 v{XT+1}, v{XT+1}, v{XT+2*i+1}')
        at(27, 0, xsum)

        def extw(p):
            self.ext_w(f'v{XT+p}', vA2, XT+2)
            a(f'v_accvgpr_write_b32 a{AEXT+8+2*p}, {vA2}')
        at(27, 2, lambda: extw(0))
        at(28, 0, lambda: extw(1))
        qs = {}

        def qread(q):
            a.wait(self.wq_last)
            a(f'ds_read_b64_tr_b16 {ar(AQ+4*q,2)}, {vK1} offset:{q*4096}')
            qs[q] = a(f'ds_read_b64_tr_b16 {ar(AQ+4*q+2,2)}, {vK1} offset:{q*4096+512}')

        def qmm(q):
            a.wait(qs[q])
            a(f'{MF16} {vr(CS+8,4)}, {vr(PO,4)}, {ar(AQ+4*q,4)}, {"0" if q == 0 else vr(CS+8,4)}')
        for q in range(8):
            at(27 + q // 4, q % 4, lambda q=q: qread(q))
            at(30 + q // 4, (1, 1, 3, 3)[q % 4], lambda q=q: qmm(q))
        so = [f's_mov_b32 vcc_lo, 0x22222222\ns_mov_b32 vcc_hi, 0x22222222\nv_cndmask_b32 v{SM+1}, v{SQ}, v{SQ+1}, vcc',
              f's_mov_b32 vcc_lo, 0x44444444\ns_mov_b32 vcc_hi, 0x44444444\nv_cndmask_b32 v{SM+1}, v{SM+1}, v{SQ+2}, vcc',
              f's_mov_b32 vcc_lo, 0x88888888\ns_mov_b32 vcc_hi, 0x88888888\nv_cndmask_b32 v{SM+1}, v{SM+1}, v{SQ+3}, vcc']
        so += self.stats_ops(SM, False, summed=True)
        for k, sl in enumerate([(30, 1), (30, 2), (30, 3), (31, 0), (31, 1), (31, 2)]):
            for o in so[4*k:4*k+4]:
                at(sl[0], sl[1], lambda o=o: a(o))
        assert len(so) <= 24
        at(4, 0, lambda: a(f'v_readfirstlane_b32 {sEP}, {vEPO}\ns_add_u32 {sEP}, {sEP}, 0x9E3779B9'))

        def slot(s, k):
            cur[0] = s
            for f in ev.get((s, k), []):
                f()
            if k % 2:
                self.bg(1)
        a.wait(gs[0])
        self.stamp('first')
        xread(0)
        shread(0)
        shread(1)
        a('s_barrier')
        wl = {}
        for s in range(2):
            wl[s] = (self.trw(WB+8*s, s, 1), self.trw(WB+8*s+4, s, 2))
        for f in range(2):
            stat(f, 0)
            shmm(0, f)
            stat(f, 1)
        for s in range(32):
            b = WB + 8*(s % 3)
            b2 = WB + 8*((s+2) % 3)
            a.wait(xr[s // 4], wl[s][0])
            a(f'{MF32} {vr(accK,16)}, {vr(b,4)}, {vr(X+4*s,4)}, {"0" if s == 0 else vr(accK,16)}')
            if s + 2 < 32:
                w0 = self.trw(b2, s+2, 1)
            slot(s, 0)
            if s + 2 < 32:
                stat(s+2, 0)
            slot(s, 1)
            a.wait(wl[s][1])
            a(f'{MF32} {vr(accV,16)}, {vr(X+4*s,4)}, {vr(b+4,4)}, {"0" if s == 0 else vr(accV,16)}')
            if s + 2 < 32:
                wl[s+2] = (w0, self.trw(b2+4, s+2, 2))
            slot(s, 2)
            if s + 2 < 32:
                stat(s+2, 1)
            slot(s, 3)
            if s == 24:
                assert not self.bgq
        self.stamp('kv')
        a(f'v_lshrrev_b32 {vA0}, 1, {vA0}')
        a(f'ds_write_b32 {vA0}, v{CS+8} offset:{XCH+2048}')
        a('s_waitcnt lgkmcnt(0)')
        a('s_barrier')

    def res_load(self):
        a = self.a
        self.res_addr(vA0)
        for i in range(4):
            self.rs = a(f'global_load_dwordx2 {vr(RES+2*i,2)}, {vA0}, {sX} offset:{16*i}')

    def xaddr(self, inst):
        a = self.a
        a(f'''
        s_lshl_b32 {sT0}, {sG}, 2
        s_add_u32 {sT0}, {sT0}, {sW}
        s_lshl_b32 {sT1}, {sT0}, 7
        s_add_u32 {sT1}, {sT1}, {F_X + inst*0x2000}
        v_and_b32 {vA3}, 15, {vLANE}
        v_lshl_add_u32 {vA3}, {vA3}, 2, {sT1}
        s_lshl_b32 {sT0}, {sT0}, 12
        s_add_u32 {sT0}, {sT0}, {ST + inst*self.ss}
        v_lshlrev_b32 {vA2}, 3, {vT}
        v_lshl_add_u32 {vA2}, {vH}, 11, {vA2}
        v_add_u32 {vA2}, {sT0}, {vA2}
        s_lshl_b32 {sT1}, {sW}, 15
        s_add_u32 {sT2}, {sGB}, {sT1}
        s_add_u32 {sT2}, {sT2}, {XF + self.xo[inst] + 4096}
        v_add_u32 {vA1}, {sT2}, {vL16}
        ''')

    def xload(self, inst, statdst):
        a = self.a
        self.poll_loop(vA3)
        self.stamp('xflag')
        seqs = {}
        q = []
        SA = self.opt.get('sa', 7)
        for s in range(32):
            def op(s=s):
                if s % 8 == 0 and s > 0:
                    a(f'v_add_u32 {vA1}, 8192, {vA1}')
                seqs[s] = a(f'global_load_dwordx4 {vr(X+4*s,4)}, {vA1}, {sWS} offset:{(s%8)*1024-4096} sc1')
            q.append(op)
            if s == SA:
                for j in range(8):
                    q.append(lambda j=j: a(f'global_load_dwordx2 {vr(statdst+2*j,2)}, {vA2}, {sWS} offset:{j*256} sc1'))
        self.xq = q
        self.xnext(self.opt.get('il', 40))
        return None, seqs

    def xnext(self, n=1):
        for _ in range(n):
            if self.xq:
                self.xq.pop(0)()

    def p1a_l1(self):
        a = self.a
        WB = ACC + 48
        SD = 232
        accK, accV = ACC, ACC + 16
        wl = {}
        for s in range(2):
            b = WB + 8*(s % 3)
            wl[s] = (self.trw(b, s, 1), self.trw(b+4, s, 2))
        sl, xs = self.xload(2, SD)
        so = self.stats_ops(SD, False)
        SA = self.opt.get('sa', 7)
        for s in range(32):
            b = WB + 8*(s % 3)
            a.wait(xs[s], wl[s][1])
            ck = '0' if s == 0 else vr(accK, 16)
            cv = '0' if s == 0 else vr(accV, 16)
            a(f'{MF32} {vr(accK,16)}, {vr(b,4)}, {vr(X+4*s,4)}, {ck}')
            if s + 2 < 32:
                b2 = WB + 8*((s+2) % 3)
                w0 = self.trw(b2, s+2, 1)
            self.xnext(1)
            if s >= SA+1:
                for o in so[:2]:
                    a(o)
                so = so[2:]
            a(f'{MF32} {vr(accV,16)}, {vr(X+4*s,4)}, {vr(b+4,4)}, {cv}')
            if s % 2 == 0 or s < self.opt.get('il2', 8):
                self.xnext(1)
            if s + 2 < 32:
                wl[s+2] = (w0, self.trw(b2+4, s+2, 2))
        assert not so
        self.stamp('kv')
        a('s_barrier')

    def w1_bg(self, tiles):
        a = self.a

        def setup():
            a(f'''
            s_mul_i32 {sT0}, {sM}, 0x1C000
            s_add_u32 {sT0}, {sT0}, {W1T}
            v_add_u32 {vBG0}, {sT0}, {vL16}
            ''')

        self.bgq.append(setup)
        for c in tiles:
            for i0 in range(0, 8 if c < 3 else 4, 4):
                for i in range(i0, i0 + 4):
                    def op(c=c, i=i, i0=i0):
                        if c < 3:
                            a(f's_add_u32 m0, {sW8K}, {c*32768 + i0*1024}')
                        else:
                            a(f's_lshl_b32 {sT0}, {sW}, 12\ns_add_u32 m0, {sT0}, {A3}')
                        if i == i0:
                            a(f'v_add_u32 {vBG1}, m0, {vBG0}')
                        self.w1seq = a(f'global_load_lds_dwordx4 {vBG1}, {sWS} offset:{(i%4)*1024}')
                    self.bgq.append(op)

    def wreg_bg(self, base, ctstride, wstride, n, dst, lo=0):
        a = self.a

        def setup():
            a(f'''
            s_mul_i32 {sT0}, {sCT}, {ctstride}
            s_mul_i32 {sT1}, {sW}, {wstride}
            s_add_u32 {sT0}, {sT0}, {sT1}
            s_add_u32 {sT0}, {sT0}, {base + 4096 + lo*2048}
            s_lshl_b32 {sT1}, {sFT}, 10
            s_add_u32 {sT2}, {sT0}, {sT1}
            s_xor_b32 {sT1}, {sT1}, 1024
            s_add_u32 {sT3}, {sT0}, {sT1}
            v_add_u32 {vBG1}, {sT2}, {vL16}
            v_add_u32 {vBG2}, {sT3}, {vL16}
            ''')
        self.bgq.append(setup)
        for i in range(lo, n):
            for j in range(2):
                def op(i=i, j=j):
                    v = (vBG1, vBG2)[j]
                    if (i - lo) % 4 == 0 and i > lo:
                        a(f'v_add_u32 {v}, 8192, {v}')
                    self.wrseq = a(f'global_load_dwordx4 {dst(i, j)}, {v}, {sWS} offset:{((i-lo)%4)*2048-4096}' + (' nt' if self.opt.get('nt', 0) & 1 and base == W2T else ''))
                self.bgq.append(op)

    def p1b(self, l):
        a = self.a
        accK, accV, accQ = ACC, ACC + 16, ACC + 32
        WB = ACC + 48
        CS = 220
        RR = 228
        XCH = A1 + 2*4096
        a(f'{MF32} {vr(accK,16)}, {ar(AEXT+8,4)}, {vr(XE+2,4)}, {vr(accK,16)}')
        a(f'{MF32} {vr(accV,16)}, {vr(XE,4)}, {ar(AEXT+8,4)}, {vr(accV,16)}')
        a(f"""
        s_lshl_b32 {sT0}, {sW}, 7
        s_add_u32 {sT0}, {sT0}, {RB}
        v_lshl_add_u32 {vA0}, {vT}, 2, {sT0}
        v_lshl_add_u32 {vA1}, {vH}, 4, {sT0}
        ds_write_b32 {vA0}, {vR}
        """)
        wl = {}
        for s in range(2):
            wl[s] = self.trw(WB + 4*(s % 3), s, 0)
        for i in range(4):
            rr = a(f'ds_read_b128 {vr(RR+4*i,4)}, {vA1} offset:{32*i}')
        if l == 0:
            a(f'v_lshlrev_b32 {vA0}, 2, {vLANE}')
            for i in range(4):
                cq = a(f'ds_read_b32 v{CS+i}, {vA0} offset:{XCH+2048+256*i}')
        a(f"""
        s_lshl_b32 {sT1}, {sM}, 14
        s_add_u32 {sT0}, {sGB}, {sT1}
        s_lshl_b32 {sT1}, {sW}, 12
        s_add_u32 {sT0}, {sT0}, {sT1}
        s_add_u32 {sT0}, {sT0}, {KV + l*0x40000}
        v_add_u32 {vA1}, {sT0}, {vL16}
        s_add_u32 {sT1}, {sT1}, {LB + 8*4096}
        v_add_u32 {vA2}, {sT1}, {vL16}
        """)

        def pub(i):
            self.kvst = a(f'global_store_dwordx4 {vA1}, {vr(accK+4*i,4)}, {sWS} offset:{i*1024} sc1')

        def publ(i):
            a(f'ds_write_b128 {vA2}, {vr(accK+4*i,4)} offset:{i*1024}')
        ep = []
        for hh in range(2):
            for j in range(8*hh, 8*hh+8):
                ep.append(f'v_mul_f32 v{accK+j}, v{accK+j}, {vR}')
            for j in range(4*hh, 4*hh+4):
                ep.append(f'v_cvt_pk_bf16_f32 v{accK+j}, v{accK+2*j}, v{accK+2*j+1}')
            ep.append(('call', lambda i=hh: pub(i)))
        ep.append(('wait', rr))
        for hh in range(2):
            for j in range(8*hh, 8*hh+8):
                ep.append(f'v_mul_f32 v{accV+j}, v{accV+j}, v{RR+j}')
            for j in range(4*hh, 4*hh+4):
                ep.append(f'v_cvt_pk_bf16_f32 v{accK+8+j}, v{accV+2*j}, v{accV+2*j+1}')
            ep.append(('call', lambda i=hh: pub(2+i)))
        for i in range(4):
            ep.append(('call', lambda i=i: publ(i)))
        hooks = {}
        if l == 0:
            ep.append(('wait', cq))
            ep += [f'v_add_f32 v{CS}, v{CS}, v{CS+1}', f'v_add_f32 v{CS+2}, v{CS+2}, v{CS+3}', f'v_add_f32 v{CS}, v{CS}, v{CS+2}']
            ep.append(('call', lambda: self.ext_w(f'v{CS}', f'v{CS+1}', CS+2)))
            ep.append(f'v_accvgpr_write_b32 a{AEXT+12}, v{CS+1}')
            TQ = self.opt.get('tq', 14)

            def tread():
                a.wait(self.tj)
                for i in range(5):
                    off = (A0 + i*4096) if i < 3 else (A1 + (i-3)*4096)
                    a(f'ds_read_b64_tr_b16 {ar(4*i,2)}, {vK0} offset:{off}')
                    self.tl = a(f'ds_read_b64_tr_b16 {ar(4*i+2,2)}, {vK0} offset:{off+512}')

            def tstore():
                a.wait(self.tl)
                a(f"""
                global_store_dwordx4 {vBG0}, {ar(0,4)}, {sWS} sc1
                global_store_dwordx4 v251, {ar(4,4)}, {sWS} sc1
                global_store_dwordx4 {vBG1}, {ar(8,4)}, {sWS} sc1
                global_store_dwordx4 {vBG1}, {ar(12,4)}, {sWS} offset:2048 sc1
                """)
                self.tst = a(f'global_store_dwordx4 {vBG2}, {ar(16,4)}, {sWS} sc1')
            hooks[TQ] = tread
            hooks[TQ+4] = tstore

        def kvflag():
            a(f"""
            s_lshl_b32 {sT0}, {sG}, 4
            s_add_u32 {sT0}, {sT0}, {sM}
            s_lshl_b32 {sT0}, {sT0}, 2
            s_add_u32 {sT0}, {sT0}, {sW}
            s_lshl_b32 {sT0}, {sT0}, 7
            s_add_u32 {sT0}, {sT0}, {F_KV + l*0x20000}
            v_mov_b32 {vA3}, {sT0}
            """)
            a.wait(self.kvst)
            self.flag_store(vA3, slow=True)
        per = 6
        for s in range(32):
            b = WB + 4*(s % 3)
            a.wait(wl[s])
            a(f'{MF32} {vr(accQ,16)}, {vr(b,4)}, {vr(X+4*s,4)}, {"0" if s == 0 else vr(accQ,16)}')
            if s + 2 < 32:
                wl[s+2] = self.trw(WB + 4*((s+2) % 3), s+2, 0)
            if s >= 1:
                for o in ep[:per]:
                    self.do(o)
                ep = ep[per:]
            if s in hooks:
                hooks[s]()
        assert not ep
        a(f'{MF32} {vr(accQ,16)}, {ar(AEXT+12,4)}, {vr(XE+2,4)}, {vr(accQ,16)}')
        a(f'v_mul_f32 {vA1}, {f2h(0.25*math.log2(math.e))}, {vR}')
        a(f's_lshl_b32 {sT0}, {sW}, 11\ns_add_u32 {sT0}, {sT0}, {QX}\nv_add_u32 {vA2}, {sT0}, {vL16}')
        if self.opt.get('kf', 0) == 0:
            kvflag()
        for hh in range(2):
            for j in range(8*hh, 8*hh+8):
                a(f'v_mul_f32 v{accQ+j}, v{accQ+j}, {vA1}')
            for j in range(4*hh, 4*hh+4):
                a(f'v_cvt_pk_bf16_f32 v{accV+j}, v{accQ+2*j}, v{accQ+2*j+1}')
            a(f'ds_write_b128 {vA2}, {vr(accV+4*hh,4)} offset:{hh*1024}')
        if self.opt.get('kf', 0) == 1:
            kvflag()
        self.stamp('q')

    def wt_flag(self):
        a = self.a
        a(f"""
        s_lshl_b32 {sT0}, {sM}, 4
        s_add_u32 {sT0}, {sT0}, {sG}
        s_lshl_b32 {sT0}, {sT0}, 7
        s_lshl_b32 {sT1}, {sW}, 2
        s_add_u32 {sT0}, {sT0}, {sT1}
        s_add_u32 {sT0}, {sT0}, {F_WT}
        v_mov_b32 v230, {sT0}
        s_and_b32 {sT0}, {sEP}, -8
        s_or_b32 {sT0}, {sT0}, {sXCC}
        """)
        a.wait(self.tst)
        self.flag_store('v230', slow=True, val=sT0)

    def wt_issue(self):
        a = self.a
        a(f"""
        s_lshl_b32 {sT0}, {sCT}, 11
        s_lshl_b32 {sT1}, {sG}, 7
        v_and_b32 v231, 15, {vLANE}
        v_lshlrev_b32 v230, 7, v231
        v_bfe_u32 v232, {vLANE}, 4, 1
        v_lshl_add_u32 v230, v232, 14, v230
        v_add_u32 v230, {sT0}, v230
        v_lshl_add_u32 v231, v231, 11, {sT1}
        v_cndmask_b32 v230, v230, v231, {sHM}
        v_add_u32 v230, {F_WT}, v230
        """)
        self.wtp = a(f'global_load_dwordx4 v[232:235], v230, {sWS} sc1')

    def wt_check(self):
        a = self.a
        ok = a.newlabel('wok')
        lp = a.newlabel('wlp')
        a.wait(self.wtp)
        a(f's_mov_b32 {sCNT}, 0')
        a.label(lp)
        a(f"""
        v_xor_b32 v231, {sEP}, v232
        v_xor_b32 v233, {sEP}, v233
        v_xor_b32 v234, {sEP}, v234
        v_xor_b32 v235, {sEP}, v235
        v_or3_b32 v231, v231, v233, v234
        v_or_b32 v231, v231, v235
        v_cmp_le_u32 vcc, 8, v231
        v_and_b32 v232, 7, v232
        s_add_u32 {sCNT}, {sCNT}, 1
        s_cmp_eq_u64 vcc, 0
        s_cbranch_scc1 {ok}
        """)
        sv = (a.vm_done, a.lg_done)
        a(f'global_load_dwordx4 v[232:235], v230, {sWS} sc1', count=False)
        a(f"""
        s_waitcnt vmcnt(0)
        s_cmp_lt_u32 {sCNT}, {sLIM}
        s_cbranch_scc1 {lp}
        s_mov_b32 {sLIM}, 1
        """)
        a.vm_done, a.lg_done = sv
        a.label(ok)
        a(f"""
        v_cmp_ne_u32 vcc, {sXCC}, v232
        s_nop 0
        s_cmp_eq_u32 vcc_hi, 0
        s_cselect_b32 {sMODE}, 1, 0
        """)

    def halo_addr(self, l):
        a = self.a
        a(f'''
        s_add_u32 {sT2}, {sG}, {sTT}
        s_max_u32 {sT2}, {sT2}, 2
        s_sub_u32 {sT2}, {sT2}, 2
        s_lshl_b32 {sT0}, {sT2}, 4
        s_add_u32 {sT0}, {sT0}, {sM}
        s_lshl_b32 {sT0}, {sT0}, 2
        s_lshl_b32 {sT1}, {sFT}, 1
        s_add_u32 {sT0}, {sT0}, {sT1}
        s_lshl_b32 {sT0}, {sT0}, 7
        s_add_u32 {sT0}, {sT0}, {F_KV + l*0x20000}
        v_and_b32 {vA3}, 1, {vLANE}
        v_lshl_add_u32 {vA3}, {vA3}, 7, {sT0}
        s_lshl_b32 {sT0}, {sT2}, 21
        s_lshl_b32 {sT1}, {sM}, 14
        s_add_u32 {sT0}, {sT0}, {sT1}
        s_lshl_b32 {sT1}, {sFT}, 13
        s_add_u32 {sT0}, {sT0}, {sT1}
        s_add_u32 {sT0}, {sT0}, {G0 + KV + l*0x40000}
        v_add_u32 {vA1}, {sT0}, {vL16}
        v_add_u32 {vA2}, 4096, {vA1}
        ''')

    def halo_dma(self):
        a = self.a
        a(f's_add_u32 m0, {sW8K}, {LB}\ns_nop 0')
        for i in range(4):
            a(f'global_load_lds_dwordx4 {vA1}, {sWS} offset:{i*1024} sc1')
        a(f's_add_u32 m0, {sW8K}, {LB+4096}\ns_nop 0')
        for i in range(4):
            seq = a(f'global_load_lds_dwordx4 {vA2}, {sWS} offset:{i*1024} sc1')
        return seq

    def prefetch_out(self):
        a = self.a
        D = vr(96, 4)
        q = []

        def s1():
            a(f'''
            s_lshl_b32 {sT1}, {sM}, 11
            s_add_u32 {sT0}, {sGB}, {sT1}
            s_lshl_b32 {sT1}, {sW}, 15
            s_add_u32 {sT0}, {sT0}, {sT1}
            s_add_u32 {sT0}, {sT0}, {OF}
            v_add_u32 v251, {sT0}, {vL16}
            s_and_b32 {sT1}, {sTQ}, 3
            s_lshl_b32 {sT1}, {sT1}, 15
            s_add_u32 {sT0}, {sGB}, {sT1}
            s_lshl_b32 {sT1}, {sPQ}, 11
            s_add_u32 {sT0}, {sT0}, {sT1}
            s_add_u32 {sT0}, {sT0}, {XF}
            v_add_u32 v252, {sT0}, {vL16}
            global_store_dwordx4 v251, {D}, {sWS} sc1
            global_store_dwordx4 v251, {D}, {sWS} offset:1024 sc1
            ''')

        def s2():
            a(f'''
            global_store_dwordx4 v252, {D}, {sWS} sc1
            global_store_dwordx4 v252, {D}, {sWS} offset:1024 sc1
            s_lshl_b32 {sT0}, {sTQ}, 12
            s_lshl_b32 {sT1}, {sPQ}, 8
            s_add_u32 {sT0}, {sT0}, {sT1}
            s_add_u32 {sT0}, {sT0}, {ST}
            v_lshl_add_u32 v251, {vLANE}, 2, {sT0}
            global_store_dword v251, v251, {sWS} sc1
            s_mul_i32 {sT1}, {sW}, {112*1024}
            s_add_u32 {sT0}, {sGB}, {sT1}
            s_mul_i32 {sT1}, {sM}, {7*1024}
            s_add_u32 {sT0}, {sT0}, {sT1}
            s_add_u32 {sT0}, {sT0}, {HF+4096}
            v_add_u32 v250, {sT0}, {vL16}
            ''')
        q += [s1, s2]
        for i in range(7):
            q.append(lambda i=i: a(f'global_store_dwordx4 v250, {D}, {sWS} offset:{i*1024-4096} sc1'))
        return q

    def attention(self, l):
        a = self.a
        Q = {'a': 96, 'b': 100}
        NM = {'a': 104, 'b': 120}
        S = [136, 152]
        O = {'a': 168, 'b': 184}
        KB = [200, 204, 208]
        VB = 212
        MX = {'a': 'v220', 'b': 'v221'}
        DL = {'a': 'v222', 'b': 'v223'}
        vBIG = 'v224'
        vK = {'a': 'v225', 'b': 'v226'}
        vV = {'a': 'v227', 'b': 'v228'}
        m = lambda j: f's[{MASK0+2*j}:{MASK0+2*j+1}]'
        self.halo_addr(l)
        hp = self.poll_issue(vA3)
        a(f'''
        s_lshl_b32 {sT0}, {sTT}, 12
        s_lshl_b32 {sT1}, {sFT}, 10
        s_add_u32 {sT2}, {sT0}, {sT1}
        s_add_u32 {sT2}, {sT2}, {LB}
        v_add_u32 {vK['a']}, {sT2}, {vL16}
        s_sub_u32 {sT3}, {sT1}, {sT0}
        s_add_u32 {sT3}, {sT3}, {LB + 3*4096}
        v_add_u32 {vK['b']}, {sT3}, {vL16}
        s_lshl_b32 {sT1}, {sFT}, 8
        s_add_u32 {sT2}, {sT0}, {sT1}
        s_add_u32 {sT2}, {sT2}, {LB + 2048}
        v_add_u32 {vV['a']}, {sT2}, {vL16}
        s_sub_u32 {sT3}, {sT1}, {sT0}
        s_add_u32 {sT3}, {sT3}, {LB + 3*4096 + 2048}
        v_add_u32 {vV['b']}, {sT3}, {vL16}
        s_lshl_b32 {sT0}, {sTT}, 11
        s_lshl_b32 {sT1}, {sFT}, 10
        s_add_u32 {sT2}, {sT0}, {sT1}
        s_add_u32 {sT2}, {sT2}, {QX}
        v_add_u32 {vA0}, {sT2}, {vL16}
        s_sub_u32 {sT3}, {sT1}, {sT0}
        s_add_u32 {sT3}, {sT3}, {QX + 3*2048}
        v_add_u32 v229, {sT3}, {vL16}
        v_mov_b32 {vBIG}, {hex(BIGNEG)}
        ''')
        for j in range(16):
            a(f'v_cndmask_b32 v{NM["a"]+j}, {vBIG}, 0, {m(j)}')
        for j in range(8):
            a(f'v_mov_b32 v{VB+j}, {sONE2}')
        a.wait_all(vm=False)
        a('s_barrier')
        a(f'ds_read_b128 {vr(Q["a"],4)}, {vA0}')
        qs = a(f'ds_read_b128 {vr(Q["b"],4)}, v229')

        def kread(st, buf):
            return a(f'ds_read_b128 {vr(buf,4)}, {vK[st[0]]} offset:{st[1]*4096}')

        def vread(st):
            a(f's_mov_b64 exec, {sLO16}')
            a(f'ds_read_b128 {vr(VB,4)}, {vV[st[0]]} offset:{st[1]*4096}')
            r = a(f'ds_read_b128 {vr(VB+4,4)}, {vV[st[0]]} offset:{st[1]*4096+1024}')
            a('s_mov_b64 exec, -1')
            return r

        def fix(st):
            s, i = st
            if (s == 'a' and i in (7, 6, 3, 2)) or (s == 'b' and i in (5, 4, 1, 0)):
                f = a.newlabel('fix')
                r = a.newlabel('fixr')
                a(f's_cmp_eq_i32 {sIA if s == "a" else sIB}, {i}\ns_cbranch_scc1 {f}')
                a.label(r)
                self.tail.append(f'{f}:\n    s_nop 15\n' + ''.join(f'    v_mov_b32 v{NM[s]+j}, {vBIG}\n' for j in range(16)) + f'    s_nop 3\n    s_branch {r}')

        def qk(st, sb, kb, C):
            a(f'{MF32} {vr(sb,16)}, {vr(kb,4)}, {vr(Q[st[0]],4)}, {C}')

        def pass1(stages, local, hook=None):
            n = len(stages)
            ks = {}
            for k in range(min(3, n)):
                ks[k] = kread(stages[k], KB[k % 3])
            acc = MX if local else DL
            first = {'a': local, 'b': local}

            def issue(k):
                st = stages[k]
                sb = S[k % 2]
                if local:
                    C = vr(NM['a'], 16) if st[1] == 8 else '0'
                else:
                    fix(st)
                    C = vr(NM[st[0]], 16)
                    if st[1] == 0:
                        for j in range(16):
                            a(f'v_cndmask_b32 v{sb+j}, v{NM[st[0]]+j}, {vBIG}, {m(j)}')
                        C = vr(sb, 16)
                a.wait(ks[k])
                qk(st, sb, KB[k % 3], C)
                if k + 3 < n:
                    ks[k+3] = kread(stages[k+3], KB[k % 3])
            issue(0)
            for k in range(n):
                if k + 1 < n:
                    issue(k + 1)
                if hook:
                    hook(k)
                s = S[k % 2]
                mx = acc[stages[k][0]]
                if first[stages[k][0]]:
                    first[stages[k][0]] = False
                    a(f'v_max3_f32 {mx}, v{s}, v{s+1}, v{s+2}')
                    for j in range(3, 15, 2):
                        a(f'v_max3_f32 {mx}, v{s+j}, v{s+j+1}, {mx}')
                    a(f'v_max_f32 {mx}, v{s+15}, {mx}')
                else:
                    for j in range(0, 16, 2):
                        a(f'v_max3_f32 {mx}, v{s+j}, v{s+j+1}, {mx}')
            for s_ in 'ab':
                mx = acc[s_]
                a(f'v_mov_b32 {vA4}, {mx}')
                a(f'v_permlane32_swap_b32 {mx}, {vA4}')
                a(f'v_max_f32 {mx}, {mx}, {vA4}')

        def pass2(stages, local, hook=None, pre=None):
            n = len(stages)
            ks = {}
            vs = {}
            first = {'a': local, 'b': local}
            ks[0] = kread(stages[0], KB[0])
            ks[1] = kread(stages[1], KB[1])
            vs[0] = vread(stages[0])
            if pre:
                pre()

            def issue(k):
                st = stages[k]
                sb = S[k % 2]
                if not local:
                    fix(st)
                C = vr(NM[st[0]], 16)
                if st[1] == 8:
                    for j in range(16):
                        a(f'v_cndmask_b32 v{sb+j}, {vBIG}, {MX[st[0]]}, {m(j)}')
                    C = vr(sb, 16)
                elif st[1] == 0:
                    for j in range(16):
                        a(f'v_cndmask_b32 v{sb+j}, v{NM[st[0]]+j}, {vBIG}, {m(j)}')
                    C = vr(sb, 16)
                a.wait(ks[k])
                qk(st, sb, KB[k % 2], C)
                if k + 2 < n:
                    ks[k+2] = kread(stages[k+2], KB[k % 2])

            def pv(k, half):
                st = stages[k]
                o = O[st[0]]
                C = vr(o, 16)
                if half == 0:
                    a.wait(vs[k])
                    if first[st[0]]:
                        first[st[0]] = False
                        C = '0'
                a(f'{MF32} {vr(o,16)}, {vr(VB+4*half,4)}, {vr(S[k%2]+4*half,4)}, {C}')
            issue(0)
            for k in range(n):
                s = S[k % 2]
                ops = []
                for j in range(16):
                    ops.append(f'v_exp_f32 v{s+j}, v{s+j}')
                    if j % 2 == 1 and j >= 3:
                        jj = (j - 3) // 2
                        ops.append(f'v_cvt_pk_bf16_f32 v{s+jj}, v{s+2*jj}, v{s+2*jj+1}')
                ops.append(f'v_cvt_pk_bf16_f32 v{s+7}, v{s+14}, v{s+15}')
                for i, o in enumerate(ops):
                    if k > 0 and i == 0:
                        pv(k-1, 0)
                    if k > 0 and i == 4:
                        pv(k-1, 1)
                        vs[k] = vread(stages[k])
                    if i == 9 and k + 1 < n:
                        issue(k + 1)
                    if hook and i in (14, 19):
                        hook(k)
                    a(o)
            pv(n-1, 0)
            pv(n-1, 1)

        loc = [('a', 8), ('b', 8), ('b', 7), ('b', 6)]
        hal = [('a', 7), ('b', 5), ('a', 6), ('b', 4), ('a', 5), ('b', 3), ('a', 4), ('b', 2), ('a', 3), ('b', 1), ('a', 2), ('b', 0), ('a', 1), ('a', 0)]
        a.wait(qs)
        pass1(loc, True)
        if l == 0:
            self.wt_flag()
        for s_ in 'ab':
            a(f'v_sub_f32 {MX[s_]}, 0, {MX[s_]}')
        late = a.newlabel('hlate')
        a.wait(hp)
        self.cmpflag(0)
        a(f's_mov_b32 {sHD}, 0\ns_cmp_eq_u64 vcc, 0\ns_cbranch_scc0 {late}')
        sv = a.vm
        self.halo_dma()
        a.vm = sv
        a(f's_mov_b32 {sHD}, 1')
        a.label(late)

        def setnm():
            for s_ in 'ba':
                for j in range(16):
                    a(f'v_mov_b32 v{NM[s_]+j}, {MX[s_]}')
        pass2(loc, True, pre=setnm)
        self.stamp('attl')
        if l == 0:
            self.wt_issue()
        done = a.newlabel('hdone')
        a(f's_cmp_eq_u32 {sHD}, 1\ns_cbranch_scc1 {done}')
        self.poll_loop(vA3)
        sv = a.vm
        self.halo_dma()
        a.vm = sv
        a.label(done)
        a(f'v_mov_b32 {DL["a"]}, 0\nv_mov_b32 {DL["b"]}, 0')
        a.wait_all()
        a('s_barrier')
        self.stamp('halo')
        if l == 0:
            self.wt_check()
            self.stamp('wt')
            self.bgq.append(self.res_load)
        self.wreg_bg(WOT, 0x10000, 0x4000, 8, lambda i, j: vr(X+8*i+4*j, 4))
        self.w1_bg((0, 1, 2, 3))
        if l == 0:
            self.wreg_bg(W2T, 0x38000, 28*2048, self.opt.get('w2a', 4), lambda i, j: ar(8*i+4*j, 4))
        if l == 0 and self.opt.get('pf', 1):
            pf = self.prefetch_out()
            st = len(self.bgq) // len(pf)
            for i, f in enumerate(pf):
                self.bgq.insert(i*(st+1), f)
        nb = len(self.bgq)
        pass1(hal, False, hook=lambda k: self.bg(1))
        self.stamp('att1')

        def rescale():
            for s_ in 'ab':
                a(f'v_sub_f32 {MX[s_]}, {MX[s_]}, {DL[s_]}')
                a(f'v_sub_f32 {DL[s_]}, 0, {DL[s_]}')
                a(f'v_exp_f32 {DL[s_]}, {DL[s_]}')
            setnm()
            for s_ in 'ab':
                for j in range(9):
                    a(f'v_mul_f32 v{O[s_]+j}, v{O[s_]+j}, {DL[s_]}')
        per = -(-len(self.bgq) // 26)
        pass2(hal, False, hook=lambda k: self.bg(per), pre=rescale)
        assert not self.bgq
        a(f'''
        s_lshl_b32 {sT1}, {sM}, 11
        s_add_u32 {sT0}, {sGB}, {sT1}
        s_lshl_b32 {sT1}, {sFT}, 10
        s_add_u32 {sT0}, {sT0}, {sT1}
        s_add_u32 {sT0}, {sT0}, {OF + l*self.os}
        s_lshl_b32 {sT1}, {sTT}, 15
        s_add_u32 {sT2}, {sT0}, {sT1}
        v_add_u32 {vA1}, {sT2}, {vL16}
        s_sub_u32 {sT2}, {sT0}, {sT1}
        s_add_u32 {sT2}, {sT2}, {3*32768}
        v_add_u32 {vA2}, {sT2}, {vL16}
        ''')
        for s_, va in (('b', vA2), ('a', vA1)):
            o = O[s_]
            a(f'v_rcp_f32 {vA0}, v{o+8}')
            for j in range(8):
                a(f'v_mul_f32 v{o+j}, v{o+j}, {vA0}')
            for j in range(4):
                a(f'v_cvt_pk_bf16_f32 v{o+j}, v{o+2*j}, v{o+2*j+1}')
            st = self.stores([f'global_store_dwordx4 {va}, {vr(o,4)}, {sWS}'])
        a(f'''
        s_lshl_b32 {sT0}, {sG}, 2
        s_lshr_b32 {sT1}, {sM}, 2
        s_add_u32 {sT0}, {sT0}, {sT1}
        s_lshl_b32 {sT0}, {sT0}, 7
        s_and_b32 {sT1}, {sM}, 3
        s_lshl_b32 {sT1}, {sT1}, 2
        s_add_u32 {sT1}, {sT1}, {sW}
        s_lshl_b32 {sT1}, {sT1}, 2
        s_add_u32 {sT0}, {sT0}, {sT1}
        s_add_u32 {sT0}, {sT0}, {F_O + l*0x4000}
        v_mov_b32 {vA3}, {sT0}
        ''')
        self.ost = st

    def unpack_res(self, dst):
        a = self.a
        for i in range(8):
            a(f'v_lshlrev_b32 v{dst+2*i}, 16, v{RES+i}')
            a(f'v_and_b32 v{dst+2*i+1}, 0xffff0000, v{RES+i}')

    def act_addr(self, tile_stride, base_lines, bias):
        a = self.a
        a(base_lines)
        a(f'''
        s_mul_i32 {sT1}, {sTT}, {tile_stride}
        s_add_u32 {sT2}, {sT0}, {sT1}
        s_sub_u32 {sT1}, {tile_stride}, {sT1}
        s_add_u32 {sT3}, {sT0}, {sT1}
        s_add_u32 {sT2}, {sT2}, {bias}
        s_add_u32 {sT3}, {sT3}, {bias}
        v_add_u32 {vA1}, {sT2}, {vL16}
        v_add_u32 {vA2}, {sT3}, {vL16}
        ''')

    def reduce_addr(self, RA):
        a = self.a
        for i in range(4):
            a(f'''
            s_xor_b32 {sT0}, {sW}, {i}
            s_mul_i32 {sT0}, {sT0}, {3*4096}
            s_add_u32 {sT0}, {sT0}, {LB + max(i-1, 0)*4096}
            v_add_u32 v{RA+i}, {sT0}, {vL16}
            ''')

    def reduce64(self, TMP, RA, late):
        a = self.a
        w = [f'ds_write_b128 v{RA+i}, {vr(ACC+16*i+4*j,4)} offset:{j*1024}' for i in range(1, 4) for j in range(4)]
        k = 0
        while w or late:
            if late:
                a(late.pop(0))
            for _ in range(2 if k % 2 else 1):
                if w:
                    a(w.pop(0))
            k += 1
        a.wait_all(vm=False)
        a('s_barrier')
        rd = []
        for i in range(12):
            rd.append(a(f'ds_read_b128 {vr(TMP+4*i,4)}, v{RA} offset:{(i%3)*4096+(i//3)*1024}'))
        for q in range(4):
            for i in range(3):
                a.wait(rd[3*q+i])
                for j in range(4):
                    r = ACC + q*4 + j
                    a(f'v_add_f32 v{r}, v{r}, v{TMP+4*(3*q+i)+j}')
            for i in (2*q, 2*q+1):
                a(f'v_cvt_pk_bf16_f32 v{RES+i}, v{ACC+2*i}, v{ACC+2*i+1}')

    def xpub_addr(self, inst, PA):
        a = self.a
        a(f'''
        s_and_b32 {sT1}, {sTQ}, 3
        s_lshl_b32 {sT1}, {sT1}, 15
        s_add_u32 {sT0}, {sGB}, {sT1}
        s_lshl_b32 {sT1}, {sPQ}, 11
        s_add_u32 {sT0}, {sT0}, {sT1}
        s_add_u32 {sT0}, {sT0}, {XF + self.xo[inst]}
        v_add_u32 v{PA}, {sT0}, {vL16}
        s_lshl_b32 {sT0}, {sTQ}, 12
        s_lshl_b32 {sT1}, {sPQ}, 8
        s_add_u32 {sT0}, {sT0}, {sT1}
        s_add_u32 {sT0}, {sT0}, {ST + inst*self.ss}
        v_lshlrev_b32 v{PA+1}, 3, {vT}
        v_lshl_add_u32 v{PA+1}, {vH}, 2, v{PA+1}
        v_add_u32 v{PA+1}, {sT0}, v{PA+1}
        s_lshl_b32 {sT0}, {sTQ}, 7
        s_lshl_b32 {sT1}, {sPQ}, 2
        s_add_u32 {sT0}, {sT0}, {sT1}
        s_add_u32 {sT0}, {sT0}, {F_X + inst*0x2000}
        v_mov_b32 v{PA+2}, {sT0}
        ''')

    def x_publish(self, inst, PA):
        a = self.a
        self.stores([f'global_store_dwordx4 v{PA}, {vr(RES,4)}, {sWS}',
                     f'global_store_dwordx4 v{PA}, {vr(RES+4,4)}, {sWS} offset:1024'])
        s, q = vA0, vA4
        a(f'v_mov_b32 {s}, 0\nv_mov_b32 {q}, 0')
        for i in range(8):
            a(f'v_dot2_f32_bf16 {s}, v{RES+i}, {sONE2}, {s}')
            a(f'v_dot2_f32_bf16 {q}, v{RES+i}, v{RES+i}, {q}')
        a(f'v_permlane32_swap_b32 {s}, {q}\ns_nop 1\nv_add_f32 {s}, {s}, {q}')
        st = self.stores([f'global_store_dword v{PA+1}, {s}, {sWS}'])
        self.xaddr(inst)
        a.wait(st)
        self.flag_store(f'v{PA+2}')

    def p2(self, l):
        a = self.a
        RA, PA = 228, 232
        AB = 96
        if l == 0:
            a.wait(self.rs)
        self.act_addr(0x8000, f'''
        s_lshl_b32 {sT1}, {sRH}, 16
        s_add_u32 {sT0}, {sGB}, {sT1}
        s_add_u32 {sT0}, {sT0}, {sW8K}
        s_add_u32 {sT0}, {sT0}, {OF + l*self.os}
        ''', 4096)
        a(f'''
        s_lshl_b32 {sT0}, {sG}, 2
        s_add_u32 {sT0}, {sT0}, {sW}
        s_lshl_b32 {sT0}, {sT0}, 7
        s_add_u32 {sT0}, {sT0}, {F_O + l*0x4000}
        v_and_b32 {vA0}, 15, {vLANE}
        v_lshl_add_u32 {vA0}, {vA0}, 2, {sT0}
        ''')
        self.reduce_addr(RA)
        self.xpub_addr(2*l+1, PA)
        a.wait(self.ost)
        self.flag_store(vA3)
        self.stamp('att2')
        self.unpack_res(ACC)
        self.poll_loop(vA0)
        self.stamp('oflag')
        seqs = {}
        for k in range(8):
            b = AB + 8*k
            s0 = a(f'global_load_dwordx4 {vr(b,4)}, {vA1}, {sWS} offset:{k*1024-4096} sc1')
            s1 = a(f'global_load_dwordx4 {vr(b+4,4)}, {vA2}, {sWS} offset:{k*1024-4096} sc1')
            seqs[k] = (s0, s1)
        if l == 0:
            self.wreg_bg(W2T, 0x38000, 28*2048, self.opt.get('w2b', 12), lambda i, j: ar(8*i+4*j, 4), lo=self.opt.get('w2a', 4))
            self.bg(100)
        wreg = lambda k, j: vr(X + 8*k + 4*j, 4)
        late = []
        for k in range(8):
            b = AB + 8*k
            c = lambda i: '0' if k == 0 else vr(ACC+16*i, 16)
            a.wait(seqs[k][0])
            a(f'{MF32} {vr(ACC+16,16)}, {wreg(k,1)}, {vr(b,4)}, {c(1)}')
            late.append(f'{MF32} {vr(ACC,16)}, {wreg(k,0)}, {vr(b,4)}, {vr(ACC,16)}')
            a.wait(seqs[k][1])
            a(f'{MF32} {vr(ACC+32,16)}, {wreg(k,0)}, {vr(b+4,4)}, {c(2)}')
            a(f'{MF32} {vr(ACC+48,16)}, {wreg(k,1)}, {vr(b+4,4)}, {c(3)}')
        self.stamp('p2mm')
        a('s_barrier')
        a(late.pop(0))
        a(late.pop(0))
        self.reduce64(X, RA, late)
        self.stamp('p2red')
        self.x_publish(2*l+1, PA)
        self.stamp('p2')

    def p3(self, l):
        a = self.a
        WA = ['v232', 'v233']
        SD = 236
        WB = ACC + 48
        GT = 236
        vHA = 'v234'
        vHF = 'v235'

        def wr(dst, s, c):
            if c < 2:
                return a(f'ds_read_b128 {vr(dst,4)}, {vL16} offset:{c*32768 + s*1024}')
            if c == 2:
                return a(f'ds_read_b128 {vr(dst,4)}, {WA[0]} offset:{s*1024}')
            return a(f'ds_read_b128 {vr(dst,4)}, {WA[1]} offset:{s*512}')
        a(f'''
        v_add_u32 {WA[0]}, {A2}, {vL16}
        v_and_b32 {vA0}, 15, {vLANE}
        v_lshl_add_u32 {vA0}, {vH}, 4, {vA0}
        v_lshlrev_b32 {vA0}, 4, {vA0}
        v_add_u32 {WA[1]}, {A3}, {vA0}
        s_mul_i32 {sT1}, {sW}, {112*1024}
        s_add_u32 {sT0}, {sGB}, {sT1}
        s_mul_i32 {sT1}, {sM}, {7*1024}
        s_add_u32 {sT0}, {sT0}, {sT1}
        s_add_u32 {sT0}, {sT0}, {HF + l*self.hs + 4096}
        v_add_u32 {vHA}, {sT0}, {vL16}
        s_lshl_b32 {sT0}, {sG}, 1
        s_add_u32 {sT0}, {sT0}, {sTT}
        s_lshl_b32 {sT0}, {sT0}, 2
        s_lshr_b32 {sT1}, {sM}, 2
        s_add_u32 {sT0}, {sT0}, {sT1}
        s_lshl_b32 {sT0}, {sT0}, 7
        s_and_b32 {sT1}, {sM}, 3
        s_lshl_b32 {sT1}, {sT1}, 1
        s_add_u32 {sT1}, {sT1}, {sFT}
        s_lshl_b32 {sT1}, {sT1}, 2
        s_add_u32 {sT0}, {sT0}, {sT1}
        s_add_u32 {sT0}, {sT0}, {F_H + l*0x8000}
        v_mov_b32 {vHF}, {sT0}
        ''')
        if l == 0:
            PO, CS, CB = ACC, ACC + 4, ACC + 8
            self.pattern_ones(PO, 'v236', 'v237')
            a(f'''
            s_cmp_eq_u32 {sW}, 3
            s_cselect_b64 vcc, -1, 0
            s_cselect_b32 {sT2}, 9, 10
            s_lshl_b32 {sT2}, 1, {sT2}
            s_lshl_b32 {sT0}, {sW}, 15
            v_add_u32 {vA0}, {sT0}, {vL16}
            v_cndmask_b32 {vA0}, {vA0}, {WA[1]}, vcc
            v_and_b32 v236, 15, {vLANE}
            v_cndmask_b32 v236, {vT}, v236, vcc
            s_mul_i32 {sT0}, {sM}, 224
            s_lshl_b32 {sT1}, {sW}, 6
            s_add_u32 {sT0}, {sT0}, {sT1}
            v_lshl_add_u32 v236, v236, 1, {sT0}
            ''')
            bl = a(f'global_load_ushort {vA4}, v236, {sB1}')
            rd = {}

            def crd(s):
                rd[s] = a(f'ds_read_b128 {vr(CB+4*(s%8),4)}, {vA0}')
                a(f'v_add_u32 {vA0}, {sT2}, {vA0}')
            for s in range(8):
                crd(s)
            for s in range(32):
                a.wait(rd[s])
                a(f'{MF16} {vr(CS,4)}, {vr(PO,4)}, {vr(CB+4*(s%8),4)}, {"0" if s == 0 else vr(CS,4)}')
                if s + 8 < 32:
                    crd(s + 8)
            self.ext_w(f'v{CS}', vA0, CB+2)
        wl = {}
        for s in range(2):
            b = WB + 8*(s % 3)
            wl[s] = (wr(b, s, 0), wr(b+4, s, 1))
        sl, xs = self.xload(2*l+1, SD)
        if l == 0:
            self.wreg_bg(W2T, 0x38000, 28*2048, 28, lambda i, j: ar(8*i+4*j, 4), lo=self.opt.get('w2b', 12))
        acc = [ACC, ACC + 16, ACC + 32, ACC]

        def gelu(c):
            A = acc[c]
            n = 8 if c == 3 else 16
            o = []
            P = 224 if c % 2 else GT + 4
            for j0 in range(0, n, 4):
                t = [f'v{GT+i}' for i in range(4)]
                x = [f'v{A+j0+i}' for i in range(4)]
                for i in range(4):
                    o.append(f'v_mul_f32 {t[i]}, {x[i]}, {x[i]}')
                for i in range(4):
                    o.append(f'v_fma_f32 {t[i]}, {t[i]}, {vK1}, {vK0}')
                for i in range(4):
                    o.append(f'v_mul_f32 {t[i]}, {t[i]}, {x[i]}')
                for i in range(4):
                    o.append(f'v_exp_f32 {t[i]}, {t[i]}')
                for i in range(4):
                    o.append(f'v_fma_f32 {t[i]}, {t[i]}, {vS}, {vS}')
                for i in range(4):
                    o.append(f'v_rcp_f32 {t[i]}, {t[i]}')
                for i in range(4):
                    o.append(f'v_mul_f32 {t[i]}, {t[i]}, {x[i]}')
                o.append(f'v_cvt_pk_bf16_f32 v{P+j0//2}, {t[0]}, {t[1]}')
                o.append(f'v_cvt_pk_bf16_f32 v{P+j0//2+1}, {t[2]}, {t[3]}')

            def st():
                ls = [f'global_store_dwordx4 {vHA}, {vr(P,4)}, {sWS} offset:{2*c*1024-4096}']
                if c < 3:
                    ls.append(f'global_store_dwordx4 {vHA}, {vr(P+4,4)}, {sWS} offset:{(2*c+1)*1024-4096}')
                self.hst = self.stores(ls)
            o.append(('call', st))
            return o

        def ext(c):
            xe = XE + 2 if c % 2 == 0 else XE
            a(f'{MF32} {vr(acc[c],16)}, {ar(AEXT+4*(c//2),4)}, {vr(xe,4)}, {vr(acc[c],16)}')
        so = self.stats_ops(SD, True)
        for s in range(32):
            b = WB + 8*(s % 3)
            a.wait(xs[s], wl[s][1])
            a(f'{MF32} {vr(acc[0],16)}, {vr(b,4)}, {vr(X+4*s,4)}, {"0" if s == 0 else vr(acc[0],16)}')
            b2 = WB + 8*((s+2) % 3)
            if s + 2 < 32:
                w0 = wr(b2, s+2, 0)
            self.xnext(1)
            if s >= self.opt.get('sa', 7)+1:
                for o in so[:3]:
                    a(o)
                so = so[3:]
            a(f'{MF32} {vr(acc[1],16)}, {vr(b+4,4)}, {vr(X+4*s,4)}, {"0" if s == 0 else vr(acc[1],16)}')
            if s % 2 == 0 or s < self.opt.get('il2', 8):
                self.xnext(1)
            if s + 2 < 32:
                wl[s+2] = (w0, wr(b2+4, s+2, 1))
            if s >= 16 and not self.xq:
                self.bg(1)
        for o in so:
            a(o)
        if l == 0:
            a.wait(bl)
            a(f'''
            v_lshl_or_b32 {vA1}, {vA4}, 16, {vA4}
            s_mul_i32 {sT0}, {sW}, {3*4096}
            s_add_u32 {sT0}, {sT0}, {LB}
            v_lshl_add_u32 {vA2}, {vLANE}, 3, {sT0}
            ds_write_b64 {vA2}, v[26:27]
            v_lshlrev_b32 {vA2}, 3, {vLANE}
            v_add_u32 {vA2}, {LB}, {vA2}
            s_waitcnt lgkmcnt(0)
            s_barrier
            ''')
            for c in range(4):
                a(f'ds_read_b64 {ar(AEXT+2*c,2)}, {vA2} offset:{c*3*4096}')
            a('s_waitcnt lgkmcnt(0)')

            def wsetup():
                a(f'''
                v_lshrrev_b32 {vBG1}, 2, {vLANE}
                v_and_b32 {vBG2}, 3, {vLANE}
                s_movk_i32 {sT0}, 3072
                v_mul_u32_u24 {vBG1}, {sT0}, {vBG1}
                v_lshl_add_u32 {vBG1}, {vBG2}, 4, {vBG1}
                s_mul_i32 {sT0}, {sW}, 49152
                s_lshl_b32 {sT1}, {sM}, 6
                s_add_u32 {sT0}, {sT0}, {sT1}
                v_add_u32 {vBG0}, {sT0}, {vBG1}
                ''')
            self.bgq.append(wsetup)
            for q in range(8):
                for p in (1, 2):
                    self.bgq.append(lambda q=q, p=p: self.wqkv_dma1(vBG0, vBG1, q, p))
        ext(0)
        ext(1)
        self.stamp('p3a')

        def tilepass(c, ops, hooks):
            wl = {}
            for s in range(3):
                wl[s] = wr(WB + 4*(s % 4), s, c)
            per = -(-len(ops) // hooks.get('n', 31))
            for s in range(32):
                a.wait(wl[s])
                a(f'{MF32} {vr(acc[c],16)}, {vr(WB+4*(s%4),4)}, {vr(X+4*s,4)}, {"0" if s == 0 else vr(acc[c],16)}')
                if s + 3 < 32:
                    wl[s+3] = wr(WB + 4*((s+3) % 4), s+3, c)
                if s >= 1:
                    for o in ops[:per]:
                        self.do(o)
                    ops = ops[per:]
                if s % 2 == 0:
                    self.bg(1)
                if s in hooks:
                    hooks[s]()
            assert not ops
            ext(c)
        tilepass(2, gelu(0) + gelu(1), {})
        self.stamp('p3b')
        hA = self.hst

        def flagA():
            a.wait(hA)
            self.flag_store(vHF)

        def p4pre():
            self.act_addr(112*1024, f'''
            s_mul_i32 {sT1}, {sRH}, {2*112*1024}
            s_add_u32 {sT0}, {sGB}, {sT1}
            s_mul_i32 {sT1}, {sW}, {28*1024}
            s_add_u32 {sT0}, {sT0}, {sT1}
            s_add_u32 {sT0}, {sT0}, {HF + l*self.hs}
            ''', 3072)
            a(f'''
            s_lshl_b32 {sT0}, {sG}, 1
            s_add_u32 {sT0}, {sT0}, {sRH}
            s_lshl_b32 {sT0}, {sT0}, 2
            s_add_u32 {sT0}, {sT0}, {sW}
            s_lshl_b32 {sT0}, {sT0}, 7
            s_add_u32 {sT0}, {sT0}, {F_H + l*0x8000}
            v_and_b32 {vA3}, 7, {vLANE}
            v_lshl_add_u32 {vA3}, {vA3}, 2, {sT0}
            s_lshl_b32 {sT0}, {sPQ}, 6
            v_lshl_add_u32 {vA0}, {vH}, 3, {sT0}
            ''')
            for i in range(4):
                self.bl = a(f'global_load_dwordx2 {vr(ACC+16+2*i,2)}, {vA0}, {sB2} offset:{16*i}')

        def pollA():
            self.hp = self.poll_issue(vA3)
        tilepass(3, gelu(2), {12: flagA, 20: p4pre, 30: pollA})
        self.bg(100)
        self.stamp('p3c')
        self.g3 = gelu(3)
        self.vHF = vHF

    def p4(self, l):
        a = self.a
        RA, PA = 224, 228
        vHF = self.vHF
        R = 16
        order = [(mm, j) for mm in range(4) for j in range(4)] + [(mm, j) for mm in range(4) for j in range(4, 7)]
        seqs = {}
        cur = [0]

        def ld(n):
            mm, j = order[n]
            if mm != cur[0]:
                d = (mm - cur[0]) * 7168
                a(f'v_add_u32 {vA1}, {hx(d)}, {vA1}\nv_add_u32 {vA2}, {hx(d)}, {vA2}')
                cur[0] = mm
            b = X + 8*(n % R)
            s0 = a(f'global_load_dwordx4 {vr(b,4)}, {vA1}, {sWS} offset:{j*1024-3072} sc1')
            s1 = a(f'global_load_dwordx4 {vr(b+4,4)}, {vA2}, {sWS} offset:{j*1024-3072} sc1')
            seqs[n] = (s0, s1)
        if l == 0:
            a('s_barrier')
        self.poll_check(self.hp, vA3)
        self.stamp('hflag')
        g3 = self.g3
        for n in range(4):
            ld(n)
            for o in g3[:16]:
                self.do(o)
            g3 = g3[16:]
        assert not g3
        hB = self.hst
        P4 = self.opt.get('p4', 0)
        for n in range(4, P4 if P4 else 12):
            ld(n)
        a(f'v_add_u32 {vA3}, 0x4000, {vA3}\nv_add_u32 {vHF}, 0x4000, {vHF}')
        BT = ACC + 16
        a.wait(self.bl)
        self.unpack_res(ACC)
        for i in range(8):
            a(f'v_lshlrev_b32 {vA0}, 16, v{BT+i}')
            a(f'v_and_b32 {vA4}, 0xffff0000, v{BT+i}')
            a(f'v_add_f32 v{ACC+2*i}, v{ACC+2*i}, {vA0}')
            a(f'v_add_f32 v{ACC+2*i+1}, v{ACC+2*i+1}, {vA4}')
        self.reduce_addr(RA)
        if l == 0:
            self.xpub_addr(2, PA)
        else:
            self.res_addr(f'v{PA}')
        late = []
        PB = self.opt.get('pb', 6)
        for n in range(28):
            mm, j = order[n]
            k = 7*mm + j
            b = X + 8*(n % R)
            wreg = lambda jj: ar(8*k + 4*jj, 4)
            c = lambda i: '0' if n == 0 else vr(ACC+16*i, 16)
            a.wait(seqs[n][0])
            a(f'{MF32} {vr(ACC+16,16)}, {wreg(1)}, {vr(b,4)}, {c(1)}')
            m0 = f'{MF32} {vr(ACC,16)}, {wreg(0)}, {vr(b,4)}, {vr(ACC,16)}'
            if n >= 20:
                late.append(m0)
            else:
                a(m0)
            a.wait(seqs[n][1])
            a(f'{MF32} {vr(ACC+32,16)}, {wreg(0)}, {vr(b+4,4)}, {c(2)}')
            a(f'{MF32} {vr(ACC+48,16)}, {wreg(1)}, {vr(b+4,4)}, {c(3)}')
            if n == self.opt.get('fb', 3):
                a.wait(hB)
                self.flag_store(vHF)
            if P4:
                if n == PB:
                    pb = self.poll_issue(vA3)
                if n + P4 == 16:
                    self.poll_check(pb, vA3)
                    self.stamp('hflagB')
                if n + P4 < 28:
                    ld(n + P4)
                if n + P4 == 27 and l == 0:
                    for q in range(8):
                        self.bgq.append(lambda q=q: self.wqkv_dma1(vBG0, vBG1, q, 0))
                if n + P4 >= 27:
                    self.bg(1)
            if n == PB and not P4:
                pb = self.poll_issue(vA3)
                for nn in range(12, 16):
                    ld(nn)
            if n == 11 and not P4:
                self.poll_check(pb, vA3)
                self.stamp('hflagB')
                for nn in range(16, 28):
                    ld(nn)
                if l == 0:
                    for q in range(8):
                        self.bgq.append(lambda q=q: self.wqkv_dma1(vBG0, vBG1, q, 0))
            if n > 11:
                self.bg(1)
        self.stamp('p4mm')
        a(late.pop(0))
        a(late.pop(0))
        self.reduce64(X, RA, late)
        self.stamp('p4red')
        if l == 0:
            self.x_publish(2, PA)
            self.stamp('p4')
        else:
            for i in range(4):
                a(f'global_store_dwordx2 v{PA}, {vr(RES+2*i,2)}, {sOUT} offset:{16*i}')
            self.stamp('end')

    def finish(self):
        a = self.a
        sk = a.newlabel('noep')
        a(f'''
        s_or_b32 {sT0}, s2, {sW}
        s_cmp_lg_u32 {sT0}, 0
        s_cbranch_scc1 {sk}
        v_mov_b32 {vA0}, 0
        v_mov_b32 {vA1}, {sEP}
        global_store_dword {vA0}, {vA1}, {sWS} sc1
        ''')
        a.label(sk)
        if self.prof:
            a(f's_waitcnt vmcnt(0)\ns_memrealtime {sPT}\ns_waitcnt lgkmcnt(0)\nv_writelane_b32 v0, s54, 63')
            a(f'''
            s_lshl_b32 {sT0}, s2, 2
            s_add_u32 {sT0}, {sT0}, {sW}
            s_lshl_b32 {sT0}, {sT0}, 8
            s_add_u32 {sT0}, {sT0}, {PROF}
            v_lshl_add_u32 {vA0}, {vLANE}, 2, {sT0}
            global_store_dword {vA0}, v0, {sWS}
            ''')


if __name__ == '__main__':
    prof = 'prof' in sys.argv
    out = sys.argv[1] if len(sys.argv) > 1 else 'k.s'
    opt = {}
    for x in sys.argv[2:]:
        if '=' in x:
            k, v = x.split('=')
            opt[k] = int(v)
    g = Gen(prof=prof, opt=opt)
    t = g.build()
    open(out, 'w').write(t)
    print('instrs', g.a.ninstr, 'nops', g.a.nops, 'bytes', len(t))
    open(out + '.names', 'w').write(' '.join(g.names))
```
